```python
import torch

def _softmax(x, axis=-1):
    return torch.softmax(x, dim=axis)
def _gelu(x):
    return torch.nn.functional.gelu(x, approximate="tanh")
def _silu(x):
    return torch.nn.functional.silu(x)
def _sigmoid(x):
    return torch.sigmoid(x)
def _layernorm(x, axis=-1, eps=1e-5):
    m = x.mean(dim=axis, keepdim=True)
    v = x.var(dim=axis, keepdim=True, unbiased=False)
    return (x - m) / torch.sqrt(v + eps)
def _scatter_add(tgt, idx, src, axis=0):
    return tgt.clone().index_add_(axis, idx, src)
def _segment_sum(src, seg, n):
    out = torch.zeros((n,) + src.shape[1:], dtype=src.dtype)
    return out.index_add_(0, seg, src)
def _pad(x, pw):
    flat = tuple(v for pair in reversed(pw) for v in pair)
    return torch.nn.functional.pad(x, flat)

kernel_name = 'interleave_layers__mha_block__mixer_channel_mlp__prompt'

def setup_inputs():

    _w = (lambda a: (lambda t: t.to(torch.bfloat16) if t.is_floating_point() else t)(torch.as_tensor(a)))
    def _A_setup():
        B, S, D, H = 1, 2048, 1024, 32
        return {
            "x": _w((lambda *s: torch.randn(*s, dtype=torch.bfloat16) * 0.05)(B, S, D)),
            "wqkv": _w((lambda *s: torch.randn(*s, dtype=torch.bfloat16) * 0.05)(D, 3 * D)),
            "wo": _w((lambda *s: torch.randn(*s, dtype=torch.bfloat16) * 0.05)(D, D)),
        }
    _A_in = _A_setup()

    def _B_setup():
        B, S, D, F = 1, 2048, 1024, 3584
        return {
            "x": _w((lambda *s: torch.randn(*s, dtype=torch.bfloat16) * 0.05)(B, S, D)),
            "w1": _w((lambda *s: torch.randn(*s, dtype=torch.bfloat16) * 3.2)(D, F) * (D ** -0.5)),
            "b1": _w((lambda *s: torch.randn(*s, dtype=torch.bfloat16) * 0.8)(F)),
            "w2": _w((lambda *s: torch.randn(*s, dtype=torch.bfloat16) * 0.4)(F, D) * (F ** -0.5)),
            "b2": _w((lambda *s: torch.randn(*s, dtype=torch.bfloat16) * 0.4)(D)),
        }
    _B_in = _B_setup()

    return {
        "A_x": _A_in["x"],
        "A_wqkv": _A_in["wqkv"],
        "A_wo": _A_in["wo"],
        "B_x": _B_in["x"],
        "B_w1": _B_in["w1"],
        "B_b1": _B_in["b1"],
        "B_w2": _B_in["w2"],
        "B_b2": _B_in["b2"],
    }

def reference(A_x, A_wqkv, A_wo, B_x, B_w1, B_b1, B_w2, B_b2):
    def _A_ref(x, wqkv, wo):
        B, S, D = x.shape
        H = 32
        Dh = D // H
        qkv = (lambda x, *d: x.permute(*d))((x @ wqkv).reshape(B, S, 3, H, Dh), 2, 0, 3, 1, 4)
        q, k, v = qkv[0], qkv[1], qkv[2]
        scores = torch.einsum("bhqd,bhkd->bhqk", q, k) * (Dh ** -0.5)
        p = _softmax(scores, axis=-1)
        o = torch.einsum("bhqk,bhkd->bhqd", p, v)
        return (lambda x, *d: x.permute(*d))(o, 0, 2, 1, 3).reshape(B, S, D) @ wo

    def _B_ref(x, w1, b1, w2, b2):
        y = _layernorm(x, axis=-1)
        h = _gelu(torch.einsum("bsd,df->bsf", y, w1) + b1)
        return torch.einsum("bsf,fd->bsd", h, w2) + b2

    x = A_x
    x = x + _A_ref(_layernorm(x, axis=-1), A_wqkv, A_wo)
    x = x + _B_ref(_layernorm(x, axis=-1), B_w1, B_b1, B_w2, B_b2)
    x = x + _A_ref(_layernorm(x, axis=-1), A_wqkv, A_wo)
    x = x + _B_ref(_layernorm(x, axis=-1), B_w1, B_b1, B_w2, B_b2)
    return x
```

```python
import re

TRANS = ("v_exp_f32", "v_log_f32", "v_rcp_f32", "v_rsq_f32", "v_sqrt_f32", "v_sin_f32", "v_cos_f32",
         "v_rcp_iflag_f32")

def _regs(tok):
    tok = tok.strip()
    neg = tok.startswith("-")
    if neg: tok = tok[1:]
    m = re.fullmatch(r"abs\((.*)\)|\|(.*)\|", tok)
    if m: tok = m.group(1) or m.group(2)
    m = re.fullmatch(r"([vsa])(\d+)", tok)
    if m: return m.group(1), [int(m.group(2))]
    m = re.fullmatch(r"([vsa])\[(\d+):(\d+)\]", tok)
    if m: return m.group(1), list(range(int(m.group(2)), int(m.group(3)) + 1))
    if tok in ("vcc",): return "s", [106, 107]
    if tok == "vcc_lo": return "s", [106]
    if tok == "vcc_hi": return "s", [107]
    if tok == "exec": return "s", [126, 127]
    if tok == "exec_lo": return "s", [126]
    if tok == "exec_hi": return "s", [127]
    if tok == "m0": return "s", [124]
    return None, []

class Ins:
    __slots__ = ("text", "op", "kind", "vw", "vr", "sw", "sr", "srcC", "srcAB", "passes", "label", "target",
                 "wide_store", "lds_dma", "nop")
    def __init__(self, text):
        self.text = text
        self.label = None; self.target = None
        self.vw = set(); self.vr = set(); self.sw = set(); self.sr = set()
        self.srcC = set(); self.srcAB = set(); self.passes = 0
        self.wide_store = False; self.lds_dma = False; self.nop = 1
        t = text.split(";")[0].strip()
        if t.endswith(":"):
            self.kind = "label"; self.label = t[:-1]; self.op = ""; self.nop = 0
            return
        if t.startswith(".") or not t:
            self.kind = "dir"; self.op = ""; self.nop = 0
            return
        parts = t.split(None, 1)
        op = parts[0]; self.op = op
        rest = parts[1] if len(parts) > 1 else ""
        ops = []; depth = 0; cur = ""
        for ch in rest:
            if ch in "[(": depth += 1
            if ch in "])": depth -= 1
            if ch == "," and depth == 0:
                ops.append(cur.strip()); cur = ""
            else:
                cur += ch
        if cur.strip(): ops.append(cur.strip())
        mods = ""
        if ops:
            sp = ops[-1].split(None, 1)
            if len(sp) > 1:
                ops[-1] = sp[0]; mods = sp[1]
        def W(tok):
            k, r = _regs(tok)
            if k == "v": self.vw.update(r)
            elif k == "a": self.vw.update(x + 1000 for x in r)
            elif k == "s": self.sw.update(r)
        def R(tok):
            k, r = _regs(tok)
            if k == "v": self.vr.update(r)
            elif k == "a": self.vr.update(x + 1000 for x in r)
            elif k == "s": self.sr.update(r)
        def VS(tok):
            k, r = _regs(tok)
            if k == "v": return set(r)
            if k == "a": return set(x + 1000 for x in r)
            return set()
        base = op.replace("_e32", "").replace("_e64", "")
        if base.startswith("v_mfma"):
            self.kind = "mfma"
            W(ops[0]); R(ops[1]); R(ops[2]); R(ops[3])
            self.srcAB = VS(ops[1]) | VS(ops[2]); self.srcC = VS(ops[3])
            self.passes = 8 if "32x32x16" in base else 4 if "16x16x32" in base else 16
        elif base.startswith("v_"):
            self.kind = "trans" if base in TRANS else "valu"
            if base.startswith("v_permlane") and "swap" in base:
                self.kind = "permlane"
                for o in ops[:2]: W(o); R(o)
            elif base.startswith("v_cmpx"):
                W(ops[0]); self.sw.update([126, 127])
                for o in ops[1:]: R(o)
            elif base in ("v_add_co_u32", "v_sub_co_u32", "v_subrev_co_u32", "v_addc_co_u32", "v_subb_co_u32",
                          "v_mad_u64_u32", "v_div_scale_f32"):
                W(ops[0]); W(ops[1])
                for o in ops[2:]: R(o)
            elif base == "v_nop":
                pass
            else:
                W(ops[0])
                for o in ops[1:]: R(o)
                if base in ("v_fmac_f32", "v_dot2c_f32_bf16", "v_pk_fmac_f16", "v_writelane_b32"): R(ops[0])
                if base in ("v_readfirstlane_b32", "v_readlane_b32"): self.kind = "readlane"
                if base.startswith("v_cndmask") and len(ops) == 3: self.sr.update([106, 107])
                if "dot2" in base: self.kind = "dot"
            if "row_" in mods or "quad_perm" in mods or "wave_" in mods or "dpp" in op: self.kind = "dpp"
        elif op.startswith("ds_"):
            self.kind = "lds"
            if op.startswith("ds_read") or op.startswith("ds_bpermute") or op.startswith("ds_permute") or op.startswith("ds_swizzle") or "_rtn" in op:
                W(ops[0])
                for o in ops[1:]: R(o)
            else:
                for o in ops: R(o)
        elif op.startswith("buffer_") or op.startswith("global_"):
            self.kind = "vmem"
            allmods = mods.split()
            if "lds" in allmods or "_lds_" in op:
                self.lds_dma = True; self.sr.add(124)
                for o in ops: R(o)
            elif "load" in op:
                W(ops[0])
                for o in ops[1:]: R(o)
            elif op.startswith("buffer_inv") or op.startswith("buffer_wbl2"):
                pass
            else:
                for o in ops: R(o)
                if "atomic" in op and "sc0" in allmods: W(ops[0])
                if op.endswith("x3") or op.endswith("x4"):
                    self.wide_store = True
                    self.srcC = VS(ops[0]) if op.startswith("buffer_") else VS(ops[1])
        elif op.startswith("s_"):
            self.kind = "salu"
            if op == "s_nop":
                self.nop = int(ops[0], 0) + 1
            elif op.startswith("s_cbranch") or op == "s_branch":
                self.kind = "branch"; self.target = ops[0]
            elif op in ("s_waitcnt", "s_barrier", "s_endpgm", "s_setprio", "s_sleep"):
                pass
            elif op.startswith("s_cmp") or op.startswith("s_bitcmp"):
                for o in ops: R(o)
            elif op.startswith("s_load") or op.startswith("s_buffer_load") or op.startswith("s_memtime") or op.startswith("s_memrealtime"):
                self.kind = "smem"
                W(ops[0])
                for o in ops[1:]: R(o)
            elif "saveexec" in op:
                W(ops[0]); R(ops[1]); self.sw.update([126, 127])
            else:
                W(ops[0])
                for o in ops[1:]: R(o)
        else:
            raise ValueError("unknown instr: " + text)

VALU_KINDS = ("valu", "trans", "permlane", "readlane", "dot", "dpp")

def need(p, c):
    n = 0
    pv = p.kind in VALU_KINDS
    cv = c.kind in VALU_KINDS
    if pv:
        if c.kind == "mfma" and (p.vw & c.vr): n = max(n, 2)
        if c.kind == "permlane" and (p.vw & c.vr): n = max(n, 2)
        if c.kind == "dpp" and (p.vw & c.vr): n = max(n, 2)
        if c.kind == "readlane" and (p.vw & c.vr): n = max(n, 1)
        if p.kind == "trans" and (cv or c.kind == "mfma") and c.kind != "trans" and (p.vw & c.vr): n = max(n, 1)
        if p.kind == "trans" and c.kind == "trans" and (p.vw & c.vr): n = max(n, 1)
        if p.sw:
            if c.kind == "vmem" and (p.sw & c.sr): n = max(n, 5)
            if cv and (p.sw & c.sr): n = max(n, 4 if c.kind == "readlane" else 2)
            if c.kind in ("salu", "branch", "smem") and (p.sw & c.sr): n = max(n, 1)
            if (p.sw & {126, 127}):
                if c.kind == "mfma": n = max(n, 4)
                if c.kind in ("readlane", "permlane"): n = max(n, 4)
                if c.kind == "dpp": n = max(n, 5)
            if (p.sw & {106, 107, 126, 127}) and c.kind == "branch" and ("vcc" in c.op or "exec" in c.op): n = max(n, 5)
        if p.kind == "dot":
            if c.kind == "dot" and c.op == p.op:
                if (p.vw & c.vr) and not (p.vw & c.vw): n = max(n, 3)
            elif (p.vw & (c.vr | c.vw)): n = max(n, 3)
    if p.kind == "mfma":
        P = p.passes
        tab_c = {2: 4, 4: 6, 8: 10, 16: 18}[P]
        tab_ab = {2: 5, 4: 8, 8: 12, 16: 20}[P]
        if c.kind == "mfma":
            if p.vw & c.srcAB: n = max(n, tab_ab)
            if p.vw & c.srcC:
                if not (p.vw == c.srcC and p.passes == c.passes): n = max(n, tab_c)
                elif P == 2: n = max(n, 2)
            if (p.vw & c.vw) and not (p.vw == c.srcC): n = max(n, tab_ab)
        else:
            if p.vw & (c.vr | c.vw): n = max(n, tab_ab)
            if cv and (p.srcC & c.vw): n = max(n, {2: 1, 4: 3, 8: 7, 16: 15}[P])
            if c.kind in ("lds", "vmem") and (p.srcC & c.vw): n = max(n, {2: 1, 4: 3, 8: 7, 16: 15}[P])
    if p.wide_store and (p.srcC & c.vw): n = max(n, 2)
    if p.kind == "salu" and (124 in p.sw) and (c.lds_dma or "addtid" in c.op): n = max(n, 1)
    return n

class Asm:
    def __init__(self):
        self.ins = []
    def __call__(self, text):
        for line in text.split("\n"):
            t = line.strip()
            if not t or t.startswith(";"): continue
            self.ins.append(Ins(t))
    def label(self, name):
        self.ins.append(Ins(name + ":"))
    def pad(self):
        MAXD = 22
        ci = 0
        def index():
            labels = {x.label: i for i, x in enumerate(self.ins) if x.kind == "label"}
            preds = {}
            for i, x in enumerate(self.ins):
                if x.kind == "branch" and x.target in labels:
                    preds.setdefault(labels[x.target], []).append(i)
            return preds
        preds = index()
        while ci < len(self.ins):
            ins = self.ins
            c = ins[ci]
            if c.kind in ("label", "dir") or c.op in ("s_nop", "s_waitcnt", "s_barrier"):
                ci += 1; continue
            worst = 0
            stack = [(ci - 1, 0, True)]
            seen = set()
            while stack:
                i, d, fall = stack.pop()
                while i >= 0 and d < MAXD:
                    p = ins[i]
                    if fall and p.op in ("s_branch", "s_endpgm"):
                        break
                    fall = True
                    if (i, d) in seen: break
                    seen.add((i, d))
                    if p.kind == "label":
                        for b in preds.get(i, []):
                            stack.append((b, d, False))
                        i -= 1
                        continue
                    if p.kind == "dir":
                        i -= 1; continue
                    n = need(p, c)
                    if n - d > worst: worst = n - d
                    d += p.nop
                    i -= 1
            if worst > 0:
                k = worst
                new = []
                while k > 0:
                    m = min(k, 16)
                    new.append(Ins(f"s_nop {m-1}"))
                    k -= m
                self.ins[ci:ci] = new
                preds = index()
                ci += len(new)
            ci += 1
    def text(self):
        out = []
        for x in self.ins:
            if x.kind == "label": out.append(x.text)
            else: out.append("    " + x.text)
        return "\n".join(out) + "\n"
    def max_vgpr(self):
        m = 0
        for x in self.ins:
            for r in x.vw | x.vr:
                if r < 1000: m = max(m, r)
        return m
    def max_sgpr(self):
        m = 0
        for x in self.ins:
            for r in x.sw | x.sr:
                if r < 102: m = max(m, r)
        return m
```

```python
import sys, math, struct
sys.path.insert(0, "gen")
from asmlib import Asm

S, D, H, DH, F = 2048, 1024, 32, 32, 3584
MB = 1 << 20
WS_Q, WS_KV, WS_O, WS_H = 0, 4 * MB, 12 * MB, 16 * MB
WS_X1, WS_X2, WS_X3 = 32 * MB, 36 * MB, 40 * MB
KA = dict(x=0, wqkv=8, wo=16, w1=32, b1=40, w2=48, b2=56, out=64, dbg=72, ws=80)
EPS = 1e-5
QSCALE = (DH ** -0.5) * math.log2(math.e)

def f32(x):
    return "0x%08x" % struct.unpack("<I", struct.pack("<f", x))[0]

def vr(b, n):
    return f"v[{b}:{b+n-1}]" if n > 1 else f"v{b}"

class Kernel:
    def __init__(self, name, grid, block, lds):
        self.name, self.grid, self.block, self.lds = name, grid, block, lds
        self.a = Asm()
    def finish(self):
        self.a.pad()
        nv = self.a.max_vgpr() + 1
        nv = (nv + 7) // 8 * 8
        ns = self.a.max_sgpr() + 1
        body = f".globl {self.name}\n.p2align 8\n.type {self.name},@function\n{self.name}:\n" + self.a.text()
        kd = f""".p2align 6
.amdhsa_kernel {self.name}
  .amdhsa_next_free_vgpr {nv}
  .amdhsa_next_free_sgpr {max(ns, 16)}
  .amdhsa_accum_offset {nv}
  .amdhsa_group_segment_fixed_size 0
  .amdhsa_kernarg_size 88
  .amdhsa_user_sgpr_count 2
  .amdhsa_user_sgpr_kernarg_segment_ptr 1
  .amdhsa_system_sgpr_workgroup_id_x 1
.end_amdhsa_kernel
"""
        return body, kd

def srd(a, d, src, size):
    if src[0] == "ka":
        a(f"s_mov_b32 s{d}, s{src[1]}\ns_mov_b32 s{d+1}, s{src[1]+1}")
    else:
        a(f"s_add_u32 s{d}, s{src[1]}, {src[2]}\ns_addc_u32 s{d+1}, s{src[1]+1}, 0")
    a(f"s_mov_b32 s{d+2}, {size}\ns_mov_b32 s{d+3}, 0x20000")

P = dict(x=16, wqkv=18, wo=20, w1=24, b1=26, w2=28, b2=30, out=32, dbg=34, ws=36)
def load_kernargs(a):
    a("""s_load_dwordx16 s[16:31], s[0:1], 0
         s_load_dwordx4 s[32:35], s[0:1], 64
         s_load_dwordx2 s[36:37], s[0:1], 80""")

def bufsrc(name):
    tbl = {
        "x": (("ka", P["x"]), S * D * 2), "out": (("ka", P["out"]), S * D * 2),
        "x1": (("ws", P["ws"], WS_X1), S * D * 2), "x2": (("ws", P["ws"], WS_X2), S * D * 2),
        "x3": (("ws", P["ws"], WS_X3), S * D * 2),
        "o": (("ws", P["ws"], WS_O), S * D * 2), "h": (("ws", P["ws"], WS_H), S * F * 2),
        "q": (("ws", P["ws"], WS_Q), S * D * 2), "kv": (("ws", P["ws"], WS_KV), 2 * S * D * 2),
        "qkv": (("ws", P["ws"], WS_Q), 3 * S * D * 2),
        "wqkv": (("ka", P["wqkv"]), D * 3 * D * 2), "wo": (("ka", P["wo"]), D * D * 2),
        "w1": (("ka", P["w1"]), D * F * 2), "w2": (("ka", P["w2"]), F * D * 2),
        "b1": (("ka", P["b1"]), F * 2), "b2": (("ka", P["b2"]), D * 2),
    }
    return tbl[name]

def gemm(name, kind, a_buf, res_buf=None, out_buf=None):
    BK = 64
    cfg = {
        "qkv": dict(K=D, N=3 * D, w="wqkv", nct=6, NS=4, a_mode="nat", xm=8, xn=4),
        "w1":  dict(K=D, N=F, w="w1", nct=7, NS=3, a_mode="nat", xm=8, xn=4),
        "wo":  dict(K=D, N=D, w="wo", nct=2, NS=6, a_mode="frag", xm=4, xn=8),
        "w2":  dict(K=F, N=D, w="w2", nct=2, NS=6, a_mode="frag", xm=4, xn=8),
    }[kind]
    K, N, nct, NS, a_mode, xm, xn = (cfg[k] for k in ("K", "N", "nct", "NS", "a_mode", "xm", "xn"))
    LN = a_mode == "nat"
    nst = K // BK
    A_BYTES = 128 * BK * 2
    STAGE = A_BYTES + nct * BK * 64
    lds = STAGE * NS
    assert lds <= 160 * 1024
    k = Kernel(name, 256, 512, lds)
    a = k.a
    L = lambda s: f"L_{name}_{s}"
    if kind == "qkv":
        colstep = 64; cts = [0, 32, 1024, 1056, 2048, 2080]
    elif kind == "w1":
        colstep = 224; cts = [32 * i for i in range(7)]
    else:
        colstep = 64; cts = [0, 32]
    last_slot = (nst - 1) % NS
    free_slot = (last_slot + 1) % NS
    STAT = free_slot * STAGE
    SCR = STAT + 1024

    S_MT, S_NT, S_W = 8, 9, 10
    load_kernargs(a)
    a(f"""
    s_cmp_ge_u32 s2, 256
    s_cbranch_scc1 {L('end')}
    s_and_b32 s4, s2, 7
    s_lshr_b32 s5, s2, 3
    s_and_b32 s6, s4, {16 // xn - 1}
    s_lshr_b32 s7, s4, {int(math.log2(16 // xn))}
    s_mul_i32 s{S_NT}, s6, {xn}
    s_and_b32 s6, s5, {xn - 1}
    s_add_u32 s{S_NT}, s{S_NT}, s6
    s_mul_i32 s{S_MT}, s7, {xm}
    s_lshr_b32 s6, s5, {int(math.log2(xn))}
    s_add_u32 s{S_MT}, s{S_MT}, s6
    v_lshrrev_b32 v1, 6, v0
    v_and_b32 v0, 63, v0
    v_readfirstlane_b32 s{S_W}, v1
    s_waitcnt lgkmcnt(0)
    s_cmp_lt_u32 s{S_W}, 4
    s_cbranch_scc1 {L('compute')}
    """)
    src, size = bufsrc(a_buf); srd(a, 40, src, size)
    src, size = bufsrc(cfg["w"]); srd(a, 44, src, size)
    S_A, S_WK, S_SLOT, S_CNT, S_RD = 48, 49, 50, 51, 52
    a(f"s_sub_u32 s{S_W}, s{S_W}, 4")
    VX = 8
    VW = 12
    if a_mode == "nat":
        a(f"""
        s_lshl_b32 s4, s{S_MT}, 7
        s_lshl_b32 s5, s{S_W}, 5
        s_add_u32 s4, s4, s5
        s_mul_i32 s{S_A}, s4, {K * 2}
        v_lshrrev_b32 v2, 3, v0
        v_mul_u32_u24 v2, {K * 2}, v2
        v_and_b32 v3, 7, v0
        v_lshrrev_b32 v4, 4, v0
        v_xor_b32 v3, v3, v4
        v_lshl_add_u32 v{VX}, v3, 4, v2
        v_xor_b32 v3, 4, v3
        v_lshl_add_u32 v{VX+1}, v3, 4, v2
        v_add_u32 v{VX+1}, {8 * K * 2}, v{VX+1}
        v_add_u32 v{VX+2}, {16 * K * 2}, v{VX}
        v_add_u32 v{VX+3}, {16 * K * 2}, v{VX+1}
        """)
        a_step = BK * 2
    else:
        a(f"""
        s_lshl_b32 s4, s{S_MT}, 2
        s_add_u32 s4, s4, s{S_W}
        s_mul_i32 s{S_A}, s4, {K // 16 * 1024}
        v_lshlrev_b32 v{VX}, 4, v0
        v_add_u32 v{VX+1}, 1024, v{VX}
        v_add_u32 v{VX+2}, 2048, v{VX}
        v_add_u32 v{VX+3}, 3072, v{VX}
        """)
        a_step = BK // 16 * 1024
    a(f"""
    s_mul_i32 s{S_WK}, s{S_W}, {16 * N * 2}
    s_mul_i32 s4, s{S_NT}, {colstep * 2}
    s_add_u32 s{S_WK}, s{S_WK}, s4
    v_lshrrev_b32 v2, 2, v0
    v_mul_u32_u24 v2, {N * 2}, v2
    v_and_b32 v3, 3, v0
    v_lshl_add_u32 v{VW}, v3, 4, v2
    """)
    for c in range(1, nct):
        a(f"v_add_u32 v{VW+c}, {cts[c] * 2}, v{VW}")
    w_step = BK * N * 2
    a(f"""
    s_lshl_b32 s5, s{S_W}, 12
    s_lshl_b32 s6, s{S_W}, 10
    s_add_u32 s6, s6, {A_BYTES}
    s_mov_b32 s{S_SLOT}, 0
    """)
    PW = 4 + nct
    def issue():
        a(f"s_add_u32 s7, s{S_SLOT}, s5")
        for i in range(4):
            a(f"s_add_u32 m0, s7, {i * 1024}\nbuffer_load_dwordx4 v{VX+i}, s[40:43], s{S_A} offen lds")
        a(f"s_add_u32 s7, s{S_SLOT}, s6")
        for c in range(nct):
            a(f"s_add_u32 m0, s7, {c * BK * 64}\nbuffer_load_dwordx4 v{VW+c}, s[44:47], s{S_WK} offen lds")
        a(f"""
        s_add_u32 s{S_A}, s{S_A}, {a_step}
        s_add_u32 s{S_WK}, s{S_WK}, {w_step}
        s_add_u32 s{S_SLOT}, s{S_SLOT}, {STAGE}
        s_cmp_eq_u32 s{S_SLOT}, {STAGE * NS}
        s_cselect_b32 s{S_SLOT}, 0, s{S_SLOT}
        """)
    for _ in range(NS - 1):
        issue()
    VSUM, VSQ, VD, VRA, VONE = 24, 28, 32, 48, 49
    if LN:
        for i in range(4):
            a(f"v_mov_b32 v{VSUM+i}, 0\nv_mov_b32 v{VSQ+i}, 0")
        a(f"v_mov_b32 v{VONE}, 0x3f803f80")
        a(f"v_lshlrev_b32 v2, 4, v0\nv_add_u32 v2, s5, v2\ns_mov_b32 s{S_RD}, 0")
    def stats():
        if not LN: return
        a(f"v_add_u32 v{VRA}, s{S_RD}, v2")
        for i in range(4):
            a(f"ds_read_b128 {vr(VD+4*i, 4)}, v{VRA} offset:{i * 1024}")
        a(f"""
        s_add_u32 s{S_RD}, s{S_RD}, {STAGE}
        s_cmp_eq_u32 s{S_RD}, {STAGE * NS}
        s_cselect_b32 s{S_RD}, 0, s{S_RD}
        """)
        for i in range(4):
            a(f"s_waitcnt lgkmcnt({3 - i})")
            for j in range(4):
                a(f"v_dot2_f32_bf16 v{VSUM+i}, v{VD+4*i+j}, v{VONE}, v{VSUM+i}")
                a(f"v_dot2_f32_bf16 v{VSQ+i}, v{VD+4*i+j}, v{VD+4*i+j}, v{VSQ+i}")
    nsteady = nst - (NS - 1)
    a(f"s_mov_b32 s{S_CNT}, {nsteady}")
    a.label(L("ld_loop"))
    a(f"s_waitcnt vmcnt({(NS - 2) * PW})\ns_barrier")
    issue()
    stats()
    a(f"s_sub_u32 s{S_CNT}, s{S_CNT}, 1\ns_cmp_lg_u32 s{S_CNT}, 0\ns_cbranch_scc1 {L('ld_loop')}")
    for t in range(NS - 1):
        a(f"s_waitcnt vmcnt({(NS - 2 - t) * PW})\ns_barrier")
        stats()
    if LN:
        for r in list(range(VSUM, VSUM + 4)) + list(range(VSQ, VSQ + 4)):
            a(f"v_add_f32_dpp v{r}, v{r}, v{r} quad_perm:[1,0,3,2] row_mask:0xf bank_mask:0xf")
        for r in list(range(VSUM, VSUM + 4)) + list(range(VSQ, VSQ + 4)):
            a(f"v_add_f32_dpp v{r}, v{r}, v{r} quad_perm:[2,3,0,1] row_mask:0xf bank_mask:0xf")
        for r in list(range(VSUM, VSUM + 4)) + list(range(VSQ, VSQ + 4)):
            a(f"v_add_f32_dpp v{r}, v{r}, v{r} row_half_mirror row_mask:0xf bank_mask:0xf")
        a(f"""
        v_lshrrev_b32 v3, 3, v0
        v_lshlrev_b32 v3, 2, v3
        s_lshl_b32 s4, s{S_W}, 7
        v_add_u32 v3, s4, v3
        """)
        for i in range(4):
            m, var, r1, t = VSUM + i, VSQ + i, VD + i, VD + 4 + i
            a(f"""
            v_mul_f32 v{m}, {f32(1.0 / K)}, v{m}
            v_mul_f32 v{var}, {f32(1.0 / K)}, v{var}
            v_fma_f32 v{var}, -v{m}, v{m}, v{var}
            v_max_f32 v{var}, 0, v{var}
            v_add_f32 v{t}, {f32(EPS)}, v{var}
            v_rsq_f32 v{r1}, v{t}
            """)
            if kind == "w1":
                a(f"""
                v_mul_f32 v{t}, v{r1}, v{r1}
                v_mul_f32 v{t}, v{t}, v{var}
                v_add_f32 v{t}, {f32(EPS)}, v{t}
                v_rsq_f32 v{t}, v{t}
                v_mul_f32 v{r1}, v{r1}, v{t}
                """)
            a(f"""
            v_mul_f32 v{m}, v{m}, v{r1}
            v_sub_f32 v{m}, 0, v{m}
            ds_write_b32 v3, v{r1} offset:{STAT % 65536 + i * 32}
            ds_write_b32 v3, v{m} offset:{STAT % 65536 + 512 + i * 32}
            """) if STAT < 65536 - 2048 else a(f"""
            v_mul_f32 v{m}, v{m}, v{r1}
            v_sub_f32 v{m}, 0, v{m}
            v_add_u32 v4, {STAT}, v3
            ds_write_b32 v4, v{r1} offset:{i * 32}
            ds_write_b32 v4, v{m} offset:{512 + i * 32}
            """)
        a("s_waitcnt lgkmcnt(0)\ns_barrier")
    a(f"s_branch {L('end')}")

    a.label(L("compute"))
    S_TP, S_FP, S_CS = 11, 12, 13
    a(f"s_and_b32 s{S_TP}, s{S_W}, 1\ns_lshr_b32 s{S_FP}, s{S_W}, 1")
    if kind == "qkv":
        nw = 3; tiles = [(f, t) for t in range(2) for f in range(3)]
    elif kind == "w1":
        nw = 4; tiles = [(f, t) for t in range(2) for f in range(3)] + [(3, 0)]
    else:
        nw = 1; tiles = [(0, 0), (0, 1)]
    r = 2
    VT = r; r += 6
    VXB = r; r += 8
    VXA = r; r += 8
    VWB = r; r += 2
    VWA = r; r += 2
    VCS = r; r += 4
    VONE = r; r += 1
    VBIAS = r; r += 4
    r = (r + 3) // 4 * 4
    FR = []
    for s_ in range(2):
        FR.append(dict(x=[r, r + 4], w=[r + 8 + 4 * i for i in range(nw)]))
        r += 8 + 4 * nw
    ACC = {}
    for tl in tiles:
        ACC[tl] = r; r += 16
    VEP = r
    a(f"""
    v_and_b32 v{VT}, 31, v0
    v_lshrrev_b32 v{VT+1}, 5, v0
    """)
    if a_mode == "nat":
        a(f"""
        v_lshrrev_b32 v{VT+2}, 1, v{VT}
        v_and_b32 v{VT+2}, 7, v{VT+2}
        v_xor_b32 v{VT+2}, v{VT+2}, v{VT+1}
        v_lshlrev_b32 v{VT+2}, 4, v{VT+2}
        v_lshl_add_u32 v{VT+2}, v{VT}, 7, v{VT+2}
        s_lshl_b32 s4, s{S_TP}, 13
        """)
        if kind == "w1":
            a(f"s_lshl_b32 s5, s{S_FP}, 12\ns_add_u32 s6, s4, s5\ns_xor_b32 s5, s5, 4096\ns_add_u32 s7, s4, s5")
        else:
            a(f"s_mov_b32 s6, s4\ns_add_u32 s7, s4, 4096")
        for ks in range(4):
            a(f"v_xor_b32 v{VT+3}, {ks * 32}, v{VT+2}")
            a(f"v_add_u32 v{VXB+ks}, s6, v{VT+3}\nv_add_u32 v{VXB+4+ks}, s7, v{VT+3}")
        nxa = 8
    else:
        a(f"""
        s_lshl_b32 s4, s{S_TP}, 13
        v_lshlrev_b32 v{VT+2}, 4, v0
        v_add_u32 v{VXB}, s4, v{VT+2}
        """)
        nxa = 1
    hmul = 9 if a_mode == "nat" else 8
    rr_off = 256 if a_mode == "nat" else 512
    a(f"""
    v_lshlrev_b32 v{VT+2}, {hmul}, v{VT+1}
    v_bfe_u32 v{VT+3}, v0, 2, 2
    v_lshl_add_u32 v{VT+2}, v{VT+3}, 6, v{VT+2}
    v_bfe_u32 v{VT+3}, v0, 4, 1
    v_lshl_add_u32 v{VT+2}, v{VT+3}, 5, v{VT+2}
    v_and_b32 v{VT+3}, 3, v0
    v_lshl_add_u32 v{VT+2}, v{VT+3}, 3, v{VT+2}
    """)
    CTB = BK * 64
    if kind == "qkv":
        a(f"s_mul_i32 s4, s{S_FP}, {CTB}"); wimm = [0, 2 * CTB, 4 * CTB]; wreg = [0, 0, 0]; nwa = 1
    elif kind == "w1":
        a(f"s_mul_i32 s4, s{S_FP}, {3 * CTB}"); wimm = [0, CTB, 2 * CTB, 0]; wreg = [0, 0, 0, 1]; nwa = 2
        a(f"v_add_u32 v{VWB+1}, {A_BYTES + 6 * CTB}, v{VT+2}")
    else:
        a(f"s_mul_i32 s4, s{S_FP}, {CTB}"); wimm = [0]; wreg = [0]; nwa = 1
    a(f"s_add_u32 s4, s4, {A_BYTES}\nv_add_u32 v{VWB}, s4, v{VT+2}")
    for tl in tiles:
        for i in range(16):
            a(f"v_mov_b32 v{ACC[tl]+i}, 0")
    if LN:
        for i in range(nw):
            a(f"v_mov_b32 v{VCS+i}, 0")
        a(f"v_mov_b32 v{VONE}, 0x3f803f80")
    if kind == "qkv":
        pass
    elif kind == "w1":
        src, size = bufsrc("b1"); srd(a, 40, src, size)
        a(f"""
        s_mul_i32 s4, s{S_NT}, 448
        s_mul_i32 s5, s{S_FP}, 192
        s_add_u32 s5, s5, s4
        s_add_u32 s4, s4, 384
        v_lshlrev_b32 v{VT+2}, 1, v{VT}
        buffer_load_ushort v{VBIAS}, v{VT+2}, s[40:43], s5 offen
        buffer_load_ushort v{VBIAS+1}, v{VT+2}, s[40:43], s5 offen offset:64
        buffer_load_ushort v{VBIAS+2}, v{VT+2}, s[40:43], s5 offen offset:128
        buffer_load_ushort v{VBIAS+3}, v{VT+2}, s[40:43], s4 offen
        """)
    else:
        src, size = bufsrc(res_buf); srd(a, 40, src, size)
        VRES = VEP; VB2 = VEP + 16; VOA = VEP + 24
        a(f"""
        s_lshl_b32 s4, s{S_MT}, 7
        s_lshl_b32 s5, s{S_TP}, 6
        s_add_u32 s4, s4, s5
        s_mul_i32 s4, s4, {D * 2}
        s_lshl_b32 s5, s{S_NT}, 7
        s_lshl_b32 s6, s{S_FP}, 6
        s_add_u32 s5, s5, s6
        s_add_u32 s14, s4, s5
        s_add_u32 s15, s14, {32 * D * 2}
        v_lshlrev_b32 v{VOA}, 11, v{VT}
        v_lshl_add_u32 v{VOA}, v{VT+1}, 3, v{VOA}
        """)
        for t in range(2):
            for i in range(4):
                a(f"buffer_load_dwordx2 {vr(VRES + 8 * t + 2 * i, 2)}, v{VOA}, s[40:43], s{14+t} offen offset:{16 * i}")
        if kind == "w2":
            src, size = bufsrc("b2"); srd(a, 44, src, size)
            a(f"v_lshlrev_b32 v{VT+2}, 3, v{VT+1}")
            for i in range(4):
                a(f"buffer_load_dwordx2 {vr(VB2 + 2 * i, 2)}, v{VT+2}, s[44:47], s5 offen offset:{16 * i}")

    def addr_update():
        for i in range(nxa):
            a(f"v_add_u32 v{VXA+i}, s{S_CS}, v{VXB+i}")
        for i in range(nwa):
            a(f"v_add_u32 v{VWA+i}, s{S_CS}, v{VWB+i}")
        a(f"""
        s_add_u32 s{S_CS}, s{S_CS}, {STAGE}
        s_cmp_eq_u32 s{S_CS}, {STAGE * NS}
        s_cselect_b32 s{S_CS}, 0, s{S_CS}
        """)
    def reads(ks, st):
        out = []
        fr = FR[st]
        def xr(t):
            if a_mode == "nat":
                return f"ds_read_b128 {vr(fr['x'][t], 4)}, v{VXA + 4 * t + ks}"
            return f"ds_read_b128 {vr(fr['x'][t], 4)}, v{VXA} offset:{t * 4096 + ks * 1024}"
        def wr(f):
            o = wimm[f] + ks * 1024
            return [f"ds_read_b64_tr_b16 {vr(fr['w'][f], 2)}, v{VWA + wreg[f]} offset:{o}",
                    f"ds_read_b64_tr_b16 {vr(fr['w'][f] + 2, 2)}, v{VWA + wreg[f]} offset:{o + rr_off}"]
        out.append(xr(0)); out += wr(0); out.append(xr(1))
        for f in range(1, nw): out += wr(f)
        return out
    def mfmas(st):
        out = []
        fr = FR[st]
        for (f, t) in tiles:
            acc = vr(ACC[(f, t)], 16)
            w_, x_ = vr(fr['w'][f], 4), vr(fr['x'][t], 4)
            if kind == "qkv" and f == 2:
                out.append(f"v_mfma_f32_32x32x16_bf16 {acc}, {x_}, {w_}, {acc}")
            else:
                out.append(f"v_mfma_f32_32x32x16_bf16 {acc}, {w_}, {x_}, {acc}")
        return out
    def csum(st):
        if not LN: return []
        fr = FR[st]
        return [f"v_dot2_f32_bf16 v{VCS+f}, v{fr['w'][f]+j}, v{VONE}, v{VCS+f}" for j in range(4) for f in range(nw)]
    def step(st, rd):
        m = mfmas(st); fill = rd + csum(st)
        per = -(-len(fill) // len(m))
        for i, mm in enumerate(m):
            a(mm)
            for x in fill[i * per:(i + 1) * per]: a(x)
    a(f"s_mov_b32 s{S_CS}, 0\ns_mov_b32 s{S_CNT}, {nst - 1}")
    addr_update()
    a("s_barrier")
    for x in reads(0, 0): a(x)
    def stage(last):
        for ks in range(3):
            a("s_waitcnt lgkmcnt(0)")
            step(ks & 1, reads(ks + 1, (ks + 1) & 1))
        a("s_waitcnt lgkmcnt(0)")
        if not last:
            addr_update()
            a("s_barrier")
            step(1, reads(0, 0))
        else:
            step(1, [])
    a.label(L("c_loop"))
    stage(False)
    a(f"s_sub_u32 s{S_CNT}, s{S_CNT}, 1\ns_cmp_lg_u32 s{S_CNT}, 0\ns_cbranch_scc1 {L('c_loop')}")
    stage(True)

    T0, T1 = VT, VT + 1
    if LN:
        for f in range(nw):
            a(f"v_mov_b32 v{VT+2}, v{VCS+f}")
            a(f"v_permlane32_swap_b32 v{VCS+f}, v{VT+2}")
            a(f"v_add_f32 v{VCS+f}, v{VCS+f}, v{VT+2}")
        a(f"""
        s_lshl_b32 s4, s{S_W}, 11
        s_add_u32 s4, s4, {SCR}
        v_lshlrev_b32 v{VT+2}, 2, v{T0}
        v_add_u32 v{VT+2}, s4, v{VT+2}
        v_lshlrev_b32 v{VT+3}, 4, v{T1}
        v_add_u32 v{VT+3}, s4, v{VT+3}
        """)
        for f in range(nw):
            a(f"ds_write_b32 v{VT+2}, v{VCS+f} offset:{f * 128}")
        if kind == "w1":
            a("s_waitcnt vmcnt(0)")
            for f in range(nw):
                a(f"v_lshlrev_b32 v{VBIAS+f}, 16, v{VBIAS+f}")
                a(f"ds_write_b32 v{VT+2}, v{VBIAS+f} offset:{512 + f * 128}")
        a("s_waitcnt lgkmcnt(0)\ns_barrier")
    FREE = FR[0]['x'][0]
    if kind == "qkv":
        src, size = bufsrc("qkv"); srd(a, 40, src, size)
        a(f"""
        s_lshl_b32 s4, s{S_NT}, 1
        s_add_u32 s4, s4, s{S_FP}
        s_lshl_b32 s4, s4, 6
        s_lshl_b32 s5, s{S_MT}, 2
        s_add_u32 s4, s4, s5
        s_lshl_b32 s5, s{S_TP}, 1
        s_add_u32 s4, s4, s5
        s_lshl_b32 s14, s4, 11
        s_lshl_b32 s15, s4, 12
        s_add_u32 s15, s15, {WS_KV - WS_Q}
        v_lshlrev_b32 v{VT+4}, 4, v0
        s_lshl_b32 s5, s{S_TP}, 8
        s_add_u32 s5, s5, {STAT}
        v_lshlrev_b32 v{VT+5}, 2, v{T0}
        v_add_u32 v{VT+5}, s5, v{VT+5}
        v_lshlrev_b32 v{VXB}, 4, v{T1}
        v_add_u32 v{VXB}, s5, v{VXB}
        """)
        CSQ, CSK = VEP, VEP + 16
        AB = VEP + 32
        TMP = VEP + 40
        PK = VEP + 56
        VA_, VB_ = FREE, FREE + 16
        for i in range(4):
            a(f"ds_read_b128 {vr(CSQ + 4 * i, 4)}, v{VT+3} offset:{i * 32}")
            a(f"ds_read_b128 {vr(CSK + 4 * i, 4)}, v{VT+3} offset:{128 + i * 32}")
        for t in range(2):
            a(f"ds_read_b32 v{AB + 2 * t}, v{VT+5} offset:{t * 128}")
            a(f"ds_read_b32 v{AB + 2 * t + 1}, v{VT+5} offset:{512 + t * 128}")
        a("s_waitcnt lgkmcnt(0)")
        for i in range(4):
            a(f"v_mul_f32 v{AB + 4 + i}, {f32(QSCALE)}, v{AB + i}")
        def store_tile(soff, off):
            for i in range(8):
                a(f"v_cvt_pk_bf16_f32 v{PK + i}, v{TMP + 2 * i}, v{TMP + 2 * i + 1}")
            a(f"buffer_store_dwordx4 {vr(PK, 4)}, v{VT+4}, s[40:43], s{soff} offen offset:{off}")
            a(f"buffer_store_dwordx4 {vr(PK + 4, 4)}, v{VT+4}, s[40:43], s{soff} offen offset:{off + 1024}")
        for t in range(2):
            for f, cs, ab in ((0, CSQ, AB + 4 + 2 * t), (1, CSK, AB + 2 * t)):
                acc = ACC[(f, t)]
                for i in range(16):
                    a(f"v_mul_f32 v{TMP + i}, v{ab + 1}, v{cs + i}")
                for i in range(16):
                    a(f"v_fma_f32 v{TMP + i}, v{acc + i}, v{ab}, v{TMP + i}")
                if f == 0: store_tile(14, t * 2048)
                else: store_tile(15, 0)
                PK_ = PK
            for i in range(4):
                a(f"ds_read_b128 {vr(VA_ + 4 * i, 4)}, v{VXB} offset:{t * 128 + i * 32}")
                a(f"ds_read_b128 {vr(VB_ + 4 * i, 4)}, v{VXB} offset:{512 + t * 128 + i * 32}")
            a("s_waitcnt lgkmcnt(0)")
            acc = ACC[(2, t)]
            for i in range(16):
                a(f"v_mul_f32 v{TMP + i}, v{VB_ + i}, v{VCS + 2}")
            for i in range(16):
                a(f"v_fma_f32 v{TMP + i}, v{acc + i}, v{VA_ + i}, v{TMP + i}")
            store_tile(15, 2048)
            if t == 0:
                a("s_add_u32 s15, s15, 4096")
    elif kind == "w1":
        src, size = bufsrc("h"); srd(a, 40, src, size)
        a(f"""
        s_lshl_b32 s4, s{S_MT}, 2
        s_lshl_b32 s5, s{S_TP}, 1
        s_add_u32 s4, s4, s5
        s_add_u32 s6, s4, s{S_FP}
        s_xor_b32 s7, s6, 1
        s_mul_i32 s6, s6, {F // 16 * 1024}
        s_mul_i32 s7, s7, {F // 16 * 1024}
        s_mul_i32 s4, s{S_NT}, {14 * 1024}
        s_add_u32 s6, s6, s4
        s_add_u32 s7, s7, s4
        s_add_u32 s13, s6, {12 * 1024}
        s_mul_i32 s4, s{S_FP}, {6 * 1024}
        s_add_u32 s14, s6, s4
        s_add_u32 s15, s7, s4
        v_lshlrev_b32 v{VT+4}, 4, v0
        s_lshl_b32 s5, s{S_TP}, 8
        s_add_u32 s5, s5, {STAT}
        s_lshl_b32 s4, s{S_FP}, 7
        s_add_u32 s6, s5, s4
        s_xor_b32 s4, s4, 128
        s_add_u32 s7, s5, s4
        v_lshlrev_b32 v{VT+5}, 2, v{T0}
        v_add_u32 v{VXB}, s6, v{VT+5}
        v_add_u32 v{VXB+1}, s7, v{VT+5}
        """)
        AB = VEP; TMP = VEP + 4; T2 = VEP + 20; PK = VEP + 36
        CS_, BI_ = FREE, FREE + 16
        for t in range(2):
            a(f"ds_read_b32 v{AB + 2 * t}, v{VXB + t}")
            a(f"ds_read_b32 v{AB + 2 * t + 1}, v{VXB + t} offset:512")
        C0 = -2.0 * math.log2(math.e) * math.sqrt(2.0 / math.pi)
        C1 = C0 * 0.044715
        a(f"s_mov_b32 s4, {f32(C0)}\ns_mov_b32 s5, {f32(C1)}\nv_mov_b32 v{VXB+2}, s4")
        for f in range(4):
            for i in range(4):
                a(f"ds_read_b128 {vr(CS_ + 4 * i, 4)}, v{VT+3} offset:{f * 128 + i * 32}")
                a(f"ds_read_b128 {vr(BI_ + 4 * i, 4)}, v{VT+3} offset:{512 + f * 128 + i * 32}")
            a("s_waitcnt lgkmcnt(0)")
            for t in range(2):
                if (f, t) not in ACC: continue
                acc = ACC[(f, t)]; ab = AB + 2 * t
                for i in range(16):
                    a(f"v_fma_f32 v{TMP + i}, v{ab + 1}, v{CS_ + i}, v{BI_ + i}")
                for i in range(16):
                    a(f"v_fma_f32 v{TMP + i}, v{acc + i}, v{ab}, v{TMP + i}")
                for i in range(16):
                    a(f"v_mul_f32 v{T2 + i}, v{TMP + i}, v{TMP + i}")
                for i in range(16):
                    a(f"v_fma_f32 v{T2 + i}, v{T2 + i}, s5, v{VXB+2}")
                for i in range(16):
                    a(f"v_mul_f32 v{T2 + i}, v{T2 + i}, v{TMP + i}")
                for i in range(16):
                    a(f"v_exp_f32 v{T2 + i}, v{T2 + i}")
                for i in range(16):
                    a(f"v_add_f32 v{T2 + i}, 1.0, v{T2 + i}")
                for i in range(16):
                    a(f"v_rcp_f32 v{T2 + i}, v{T2 + i}")
                for i in range(16):
                    a(f"v_mul_f32 v{TMP + i}, v{TMP + i}, v{T2 + i}")
                for i in range(8):
                    a(f"v_cvt_pk_bf16_f32 v{PK + i}, v{TMP + 2 * i}, v{TMP + 2 * i + 1}")
                if f < 3:
                    so, off = 14 + t, f * 2048
                    if off + 1024 > 4095:
                        a(f"s_add_u32 s6, s{so}, {off}"); so, off = 6, 0
                else:
                    so, off = 13, 0
                a(f"buffer_store_dwordx4 {vr(PK, 4)}, v{VT+4}, s[40:43], s{so} offen offset:{off}")
                a(f"buffer_store_dwordx4 {vr(PK + 4, 4)}, v{VT+4}, s[40:43], s{so} offen offset:{off + 1024}")
    else:
        src, size = bufsrc(out_buf); srd(a, 48, src, size)
        TMP = FREE
        a("s_waitcnt vmcnt(0)")
        for t in range(2):
            acc = ACC[(0, t)]
            for i in range(8):
                rsrc = VRES + 8 * t + i
                a(f"v_lshlrev_b32 v{VT+2}, 16, v{rsrc}\nv_and_b32 v{VT+3}, 0xffff0000, v{rsrc}")
                a(f"v_add_f32 v{acc + 2 * i}, v{acc + 2 * i}, v{VT+2}\nv_add_f32 v{acc + 2 * i + 1}, v{acc + 2 * i + 1}, v{VT+3}")
                if kind == "w2":
                    bs = VB2 + i
                    a(f"v_lshlrev_b32 v{VT+2}, 16, v{bs}\nv_and_b32 v{VT+3}, 0xffff0000, v{bs}")
                    a(f"v_add_f32 v{acc + 2 * i}, v{acc + 2 * i}, v{VT+2}\nv_add_f32 v{acc + 2 * i + 1}, v{acc + 2 * i + 1}, v{VT+3}")
                a(f"v_cvt_pk_bf16_f32 v{TMP + 8 * t + i}, v{acc + 2 * i}, v{acc + 2 * i + 1}")
            for i in range(4):
                a(f"buffer_store_dwordx2 {vr(TMP + 8 * t + 2 * i, 2)}, v{VOA}, s[48:51], s{14+t} offen offset:{16 * i}")
    a.label(L("end"))
    a("s_endpgm")
    return k

def attn(name):
    CT = 4; NS = 8; CH = CT * 4096; NCH = 64 // CT
    k = Kernel(name, 256, 512, CH * NS)
    a = k.a
    L = lambda s: f"L_{name}_{s}"
    load_kernargs(a)
    S_W, S_HD, S_QT, S_G, S_SLOT, S_CNT, S_RD = 8, 9, 10, 11, 12, 13, 14
    a(f"""
    s_cmp_ge_u32 s2, 256
    s_cbranch_scc1 {L('end')}
    s_and_b32 s4, s2, 7
    s_lshr_b32 s5, s2, 3
    s_lshr_b32 s6, s5, 3
    s_lshl_b32 s{S_HD}, s4, 2
    s_add_u32 s{S_HD}, s{S_HD}, s6
    s_and_b32 s5, s5, 7
    v_lshrrev_b32 v1, 6, v0
    v_and_b32 v0, 63, v0
    v_readfirstlane_b32 s{S_W}, v1
    s_waitcnt lgkmcnt(0)
    s_lshl_b32 s{S_QT}, s5, 3
    s_add_u32 s{S_QT}, s{S_QT}, s{S_W}
    """)
    src, size = bufsrc("q"); srd(a, 40, src, size)
    src, size = bufsrc("kv"); srd(a, 44, src, size)
    src, size = bufsrc("o"); srd(a, 48, src, size)
    r = 2
    VL16 = r; r += 1
    VCUR = r; r += 1
    VNXT = r; r += 1
    VT = r; r += 3
    Q = 8; KF = 16; VF = 24; SEL = 32; LACC = 36; PP = 40; NEGM = 48; SA = 64; SB = 80; O = 96; TMP = 112
    a(f"""
    v_lshlrev_b32 v{VL16}, 4, v0
    s_lshl_b32 s4, s{S_HD}, 6
    s_add_u32 s4, s4, s{S_QT}
    s_lshl_b32 s4, s4, 11
    buffer_load_dwordx4 {vr(Q, 4)}, v{VL16}, s[40:43], s4 offen
    buffer_load_dwordx4 {vr(Q + 4, 4)}, v{VL16}, s[40:43], s4 offen offset:1024
    s_lshl_b32 s{S_G}, s{S_HD}, 18
    s_lshl_b32 s5, s{S_W}, 11
    s_add_u32 s{S_G}, s{S_G}, s5
    s_mov_b32 s{S_SLOT}, s5
    s_add_u32 s6, s5, {CH * NS}
    """)
    def issue():
        a(f"""
        s_mov_b32 m0, s{S_SLOT}
        buffer_load_dwordx4 v{VL16}, s[44:47], s{S_G} offen lds
        buffer_load_dwordx4 v{VL16}, s[44:47], s{S_G} offen offset:1024 lds
        s_add_u32 s{S_G}, s{S_G}, {CH}
        s_add_u32 s{S_SLOT}, s{S_SLOT}, {CH}
        s_cmp_eq_u32 s{S_SLOT}, s6
        s_cselect_b32 s{S_SLOT}, s5, s{S_SLOT}
        """)
    for _ in range(NS - 1): issue()
    a(f"""
    v_lshrrev_b32 v{VT}, 2, v0
    v_lshrrev_b32 v{VT+1}, 4, v0
    v_xor_b32 v{VT}, v{VT}, v{VT+1}
    v_and_b32 v{VT}, 1, v{VT}
    v_cmp_eq_u32 vcc, 0, v{VT}
    v_mov_b32 v{VT+1}, 0x3f803f80
    v_cndmask_b32 v{SEL}, 0, v{VT+1}, vcc
    v_mov_b32 v{SEL+1}, v{SEL}
    v_mov_b32 v{SEL+2}, v{SEL}
    v_mov_b32 v{SEL+3}, v{SEL}
    v_mov_b32 v{VCUR}, v{VL16}
    v_add_u32 v{VNXT}, {CH}, v{VL16}
    s_mov_b32 s{S_RD}, {2 * CH}
    s_mov_b32 s{S_CNT}, 0
    """)
    for i in range(4): a(f"v_mov_b32 v{LACC+i}, 0")
    for i in range(16): a(f"v_mov_b32 v{O+i}, 0")
    a(f"s_waitcnt vmcnt({2 * (NS - 2)})\ns_barrier")
    def rdK(addr, t): return [f"ds_read_b128 {vr(KF, 4)}, v{addr} offset:{t * 4096}",
                              f"ds_read_b128 {vr(KF + 4, 4)}, v{addr} offset:{t * 4096 + 1024}"]
    def rdV(addr, t, j): return f"ds_read_b128 {vr(VF + 4 * j, 4)}, v{addr} offset:{t * 4096 + 2048 + 1024 * j}"
    for x in rdK(VCUR, 0): a(x)
    a(rdV(VCUR, 0, 0)); a(rdV(VCUR, 0, 1))
    a(f"""
    s_waitcnt lgkmcnt(2)
    v_mfma_f32_32x32x16_bf16 {vr(SB, 16)}, {vr(KF, 4)}, {vr(Q, 4)}, 0
    v_mfma_f32_32x32x16_bf16 {vr(SB, 16)}, {vr(KF + 4, 4)}, {vr(Q + 4, 4)}, {vr(SB, 16)}
    v_max3_f32 v{VT}, v{SB}, v{SB+1}, v{SB+2}
    """)
    for i in range(3, 15, 2):
        a(f"v_max3_f32 v{VT}, v{VT}, v{SB+i}, v{SB+i+1}")
    a(f"""
    v_max_f32 v{VT}, v{VT}, v{SB+15}
    v_mov_b32 v{VT+1}, v{VT}
    v_permlane32_swap_b32 v{VT}, v{VT+1}
    v_max_f32 v{VT}, v{VT}, v{VT+1}
    """)
    for i in range(16): a(f"v_sub_f32 v{NEGM+i}, 0, v{VT}")
    a(f"""
    v_mfma_f32_32x32x16_bf16 {vr(SA, 16)}, {vr(KF, 4)}, {vr(Q, 4)}, {vr(NEGM, 16)}
    v_mfma_f32_32x32x16_bf16 {vr(SA, 16)}, {vr(KF + 4, 4)}, {vr(Q + 4, 4)}, {vr(SA, 16)}
    """)
    for x in rdK(VCUR, 1): a(x)
    a("s_waitcnt lgkmcnt(0)")
    a.label(L("loop"))
    for t in range(CT):
        sc, sn = (SA, SB) if t % 2 == 0 else (SB, SA)
        kaddr, kt = (VCUR, t + 2) if t + 2 < CT else (VNXT, t + 2 - CT)
        vaddr, vt = (VCUR, t + 1) if t + 1 < CT else (VNXT, t + 1 - CT)
        e = lambda i: f"v_exp_f32 v{TMP + i}, v{sc + i}"
        c = lambda i: f"v_cvt_pk_bf16_f32 v{PP + i}, v{TMP + 2 * i}, v{TMP + 2 * i + 1}"
        if t == CT - 2:
            a(f"""
            s_cmp_lt_u32 s{S_CNT}, {NCH - NS + 1}
            s_cbranch_scc1 {L('steady')}
            s_waitcnt vmcnt(0)
            s_barrier
            s_branch {L('join')}
            """)
            a.label(L("steady"))
            a(f"s_waitcnt vmcnt({2 * (NS - 3)})\ns_barrier")
            issue()
            a.label(L("join"))
        a("s_waitcnt lgkmcnt(2)")
        a(f"v_mfma_f32_32x32x16_bf16 {vr(sn, 16)}, {vr(KF, 4)}, {vr(Q, 4)}, {vr(NEGM, 16)}")
        for i in range(4): a(e(i))
        a(f"v_mfma_f32_32x32x16_bf16 {vr(sn, 16)}, {vr(KF + 4, 4)}, {vr(Q + 4, 4)}, {vr(sn, 16)}")
        for x in rdK(kaddr, kt): a(x)
        a(e(4)); a(e(5)); a(c(0)); a(c(1)); a(e(6)); a(e(7)); a(e(8)); a(c(2)); a(c(3)); a(e(9))
        a("s_waitcnt lgkmcnt(3)")
        a(f"v_mfma_f32_32x32x16_bf16 {vr(O, 16)}, {vr(VF, 4)}, {vr(PP, 4)}, {vr(O, 16)}")
        a(rdV(vaddr, vt, 0))
        a(e(10)); a(e(11))
        a(f"v_mfma_f32_16x16x32_bf16 {vr(LACC, 4)}, {vr(SEL, 4)}, {vr(PP, 4)}, {vr(LACC, 4)}")
        a(e(12)); a(e(13)); a(c(4)); a(c(5)); a(e(14)); a(e(15)); a(c(6)); a(c(7))
        a("s_waitcnt lgkmcnt(3)")
        a(f"v_mfma_f32_32x32x16_bf16 {vr(O, 16)}, {vr(VF + 4, 4)}, {vr(PP + 4, 4)}, {vr(O, 16)}")
        a(rdV(vaddr, vt, 1))
        a(f"v_mfma_f32_16x16x32_bf16 {vr(LACC, 4)}, {vr(SEL, 4)}, {vr(PP + 4, 4)}, {vr(LACC, 4)}")
    a(f"""
    v_mov_b32 v{VCUR}, v{VNXT}
    v_add_u32 v{VNXT}, s{S_RD}, v{VL16}
    s_add_u32 s{S_RD}, s{S_RD}, {CH}
    s_cmp_eq_u32 s{S_RD}, {CH * NS}
    s_cselect_b32 s{S_RD}, 0, s{S_RD}
    s_add_u32 s{S_CNT}, s{S_CNT}, 1
    s_cmp_lt_u32 s{S_CNT}, {NCH}
    s_cbranch_scc1 {L('loop')}
    s_waitcnt lgkmcnt(0)
    """)
    a(f"""
    v_mov_b32 v{VT}, v{LACC}
    """)
    for i in range(0, 16, 2):
        a(f"v_max3_f32 v{VT}, v{VT}, abs(v{O+i}), abs(v{O+i+1})")
    a(f"v_mov_b32 v{VT+1}, v{LACC}")
    for i in range(16):
        a(f"v_add_f32 v{VT+1}, v{VT+1}, v{O+i}")
    a(f"""
    s_mov_b32 s4, {f32(2.0 ** 60)}
    v_cmp_nle_f32 vcc, v{VT}, s4
    v_cmp_u_f32 s[6:7], v{VT+1}, v{VT+1}
    s_or_b64 vcc, vcc, s[6:7]
    s_cbranch_vccz {L('fin')}
    """)
    M, LS, AL = VCUR, VNXT, VT + 2
    a(f"""
    v_sub_f32 v{M}, 0, v{NEGM}
    v_mov_b32 v{LS}, 0
    s_lshl_b32 s{S_G}, s{S_HD}, 18
    s_mov_b32 s{S_CNT}, 0
    """)
    for i in range(16): a(f"v_mov_b32 v{O+i}, 0")
    a.label(L("slow"))
    a(f"""
    buffer_load_dwordx4 {vr(KF, 4)}, v{VL16}, s[44:47], s{S_G} offen
    buffer_load_dwordx4 {vr(KF + 4, 4)}, v{VL16}, s[44:47], s{S_G} offen offset:1024
    buffer_load_dwordx4 {vr(VF, 4)}, v{VL16}, s[44:47], s{S_G} offen offset:2048
    buffer_load_dwordx4 {vr(VF + 4, 4)}, v{VL16}, s[44:47], s{S_G} offen offset:3072
    s_waitcnt vmcnt(0)
    v_mfma_f32_32x32x16_bf16 {vr(SB, 16)}, {vr(KF, 4)}, {vr(Q, 4)}, 0
    v_mfma_f32_32x32x16_bf16 {vr(SB, 16)}, {vr(KF + 4, 4)}, {vr(Q + 4, 4)}, {vr(SB, 16)}
    v_max3_f32 v{VT}, v{SB}, v{SB+1}, v{SB+2}
    """)
    for i in range(3, 15, 2):
        a(f"v_max3_f32 v{VT}, v{VT}, v{SB+i}, v{SB+i+1}")
    a(f"""
    v_max_f32 v{VT}, v{VT}, v{SB+15}
    v_mov_b32 v{VT+1}, v{VT}
    v_permlane32_swap_b32 v{VT}, v{VT+1}
    v_max3_f32 v{VT}, v{VT}, v{VT+1}, v{M}
    v_sub_f32 v{AL}, v{M}, v{VT}
    v_exp_f32 v{AL}, v{AL}
    v_mov_b32 v{M}, v{VT}
    v_mul_f32 v{LS}, v{LS}, v{AL}
    """)
    for i in range(16):
        a(f"v_sub_f32 v{TMP+i}, v{SB+i}, v{M}")
    for i in range(16):
        a(f"v_exp_f32 v{TMP+i}, v{TMP+i}")
    for i in range(16):
        a(f"v_mul_f32 v{O+i}, v{O+i}, v{AL}")
    for i in range(8):
        a(f"v_cvt_pk_bf16_f32 v{PP + i}, v{TMP + 2 * i}, v{TMP + 2 * i + 1}")
    for i in range(8):
        a(f"v_lshlrev_b32 v{VT}, 16, v{PP+i}\nv_and_b32 v{VT+1}, 0xffff0000, v{PP+i}")
        a(f"v_add_f32 v{LS}, v{LS}, v{VT}\nv_add_f32 v{LS}, v{LS}, v{VT+1}")
    a(f"""
    v_mfma_f32_32x32x16_bf16 {vr(O, 16)}, {vr(VF, 4)}, {vr(PP, 4)}, {vr(O, 16)}
    v_mfma_f32_32x32x16_bf16 {vr(O, 16)}, {vr(VF + 4, 4)}, {vr(PP + 4, 4)}, {vr(O, 16)}
    s_add_u32 s{S_G}, s{S_G}, 4096
    s_add_u32 s{S_CNT}, s{S_CNT}, 1
    s_cmp_lt_u32 s{S_CNT}, 64
    s_cbranch_scc1 {L('slow')}
    v_mov_b32 v{VT}, v{LS}
    v_permlane32_swap_b32 v{LS}, v{VT}
    v_add_f32 v{LACC}, v{LS}, v{VT}
    """)
    a.label(L("fin"))
    a(f"""
    v_rcp_f32 v{VT}, v{LACC}
    s_lshl_b32 s4, s{S_QT}, 16
    s_lshl_b32 s5, s{S_HD}, 11
    s_add_u32 s4, s4, s5
    """)
    for i in range(16):
        a(f"v_mul_f32 v{TMP+i}, v{O+i}, v{VT}")
    for i in range(8):
        a(f"v_cvt_pk_bf16_f32 v{PP + i}, v{TMP + 2 * i}, v{TMP + 2 * i + 1}")
    a(f"""
    buffer_store_dwordx4 {vr(PP, 4)}, v{VL16}, s[48:51], s4 offen
    buffer_store_dwordx4 {vr(PP + 4, 4)}, v{VL16}, s[48:51], s4 offen offset:1024
    """)
    a.label(L("end"))
    a("s_endpgm")
    return k

def main():
    out = sys.argv[1]
    ks = [
        gemm("qkv1_kernel", "qkv", "x"),
        attn("attn_kernel"),
        gemm("wo1_kernel", "wo", "o", res_buf="x", out_buf="x1"),
        gemm("w1a_kernel", "w1", "x1"),
        gemm("w2a_kernel", "w2", "h", res_buf="x1", out_buf="x2"),
        gemm("qkv2_kernel", "qkv", "x2"),
        gemm("wo2_kernel", "wo", "o", res_buf="x2", out_buf="x3"),
        gemm("w1b_kernel", "w1", "x3"),
        gemm("w2b_kernel", "w2", "h", res_buf="x3", out_buf="out"),
    ]
    byname = {k.name: k for k in ks}
    order = ["qkv1_kernel", "attn_kernel", "wo1_kernel", "w1a_kernel", "w2a_kernel",
             "qkv2_kernel", "attn_kernel", "wo2_kernel", "w1b_kernel", "w2b_kernel"]
    hdr = open("interleave_layers__mha_block__mixer_channel_mlp__prompt.s.ref").read().split("; Override")[0]
    txt = hdr
    for n in order:
        k = byname[n]
        txt += f"; @launch kernel={k.name} grid=({k.grid},1,1) block=({k.block},1,1) lds={k.lds}\n"
    txt += '.amdgcn_target "amdgcn-amd-amdhsa--gfx950"\n.text\n'
    kds = ""
    for k in ks:
        b, kd = k.finish()
        txt += b; kds += kd
    txt += '.section .rodata,"a"\n' + kds
    open(out, "w").write(txt)

if __name__ == "__main__":
    main()
```

```python
import sys, math, struct
sys.path.insert(0, "gen")
from asmlib import Asm

S, D, H, DH, F = 2048, 1024, 32, 32, 3584
MB = 1 << 20
WS_Q, WS_KV, WS_O, WS_H = 0, 4 * MB, 12 * MB, 16 * MB
WS_X1, WS_X2, WS_X3 = 32 * MB, 36 * MB, 40 * MB
WS_CSQ, WS_CS1 = 44 * MB, 44 * MB + 65536
WS_WT = 52 * MB
WT_OFF = dict(wqkv=0, wo=6 * MB, w1=8 * MB, w2=16 * MB)
ST = ' sc1'
KA = dict(x=0, wqkv=8, wo=16, w1=32, b1=40, w2=48, b2=56, out=64, dbg=72, ws=80)
EPS = 1e-5
QSCALE = (DH ** -0.5) * math.log2(math.e)

def f32(x):
    return "0x%08x" % struct.unpack("<I", struct.pack("<f", x))[0]

def vr(b, n):
    return f"v[{b}:{b+n-1}]" if n > 1 else f"v{b}"

class Kernel:
    def __init__(self, name, grid, block, lds):
        self.name, self.grid, self.block, self.lds = name, grid, block, lds
        self.a = Asm()
    def finish(self):
        self.a.pad()
        nv = self.a.max_vgpr() + 1
        nv = (nv + 7) // 8 * 8
        ns = self.a.max_sgpr() + 1
        body = f".globl {self.name}\n.p2align 8\n.type {self.name},@function\n{self.name}:\n" + self.a.text()
        kd = f""".p2align 6
.amdhsa_kernel {self.name}
  .amdhsa_next_free_vgpr {nv}
  .amdhsa_next_free_sgpr {max(ns, 16)}
  .amdhsa_accum_offset {nv}
  .amdhsa_group_segment_fixed_size 0
  .amdhsa_kernarg_size 88
  .amdhsa_user_sgpr_count 2
  .amdhsa_user_sgpr_kernarg_segment_ptr 1
  .amdhsa_system_sgpr_workgroup_id_x 1
.end_amdhsa_kernel
"""
        return body, kd

import os
DIAG = bool(os.environ.get("DIAG"))
KIDX = [0]
def stamp(a, i):
    if not DIAG: return
    a(f"s_memtime s[{64+2*i}:{65+2*i}]")
def stamp_real(a, i):
    if not DIAG: return
    a(f"s_memrealtime s[{64+2*i}:{65+2*i}]")
def stamp_flush(a, n, wreg, label):
    if not DIAG: return
    a(f"""
    s_waitcnt vmcnt(0) lgkmcnt(0)
    s_memtime s[{64+2*n}:{65+2*n}]
    s_memrealtime s[{66+2*n}:{67+2*n}]
    s_waitcnt lgkmcnt(0)
    s_cmp_lg_u32 s{wreg}, 0
    s_cbranch_scc1 {label}
    s_add_u32 s88, s36, {48 * MB + KIDX[0] * 8192}
    s_addc_u32 s89, s37, 0
    s_mov_b32 s90, 8192
    s_mov_b32 s91, 0x20000
    s_lshl_b32 s60, s2, 4
    v_mov_b32 v1, s60
    v_mov_b32 v4, s66
    v_mov_b32 v5, s{66+2*n}
    s_getreg_b32 s61, hwreg(HW_REG_XCC_ID)
    v_mov_b32 v6, s61
    s_sub_u32 s61, s{64+2*n}, s64
    v_mov_b32 v7, s61
    buffer_store_dwordx4 v[4:7], v1, s[88:91], 0 offen
    s_cmp_ge_u32 s2, 8
    s_cbranch_scc1 {label}
    s_mov_b32 s88, s34
    s_mov_b32 s89, s35
    s_mov_b32 s90, 256
    s_mov_b32 s91, 0x20000
    s_lshl_b32 s60, s2, 5
    v_mov_b32 v1, s60
    """)
    for i in range(2, n + 1):
        a(f"s_sub_u32 s61, s{64+2*i}, s64\nv_mov_b32 v2, s61\nbuffer_store_dword v2, v1, s[88:91], 0 offen offset:{4*(i-2)}")
    a(f"s_sub_u32 s61, s{66+2*n}, s66\nv_mov_b32 v2, s61\nbuffer_store_dword v2, v1, s[88:91], 0 offen offset:{4*(n-1)}")

def srd(a, d, src, size):
    if src[0] == "ka":
        a(f"s_mov_b32 s{d}, s{src[1]}\ns_mov_b32 s{d+1}, s{src[1]+1}")
    else:
        a(f"s_add_u32 s{d}, s{src[1]}, {src[2]}\ns_addc_u32 s{d+1}, s{src[1]+1}, 0")
    a(f"s_mov_b32 s{d+2}, {size}\ns_mov_b32 s{d+3}, 0x20000")

P = dict(x=16, wqkv=18, wo=20, w1=24, b1=26, w2=28, b2=30, out=32, dbg=34, ws=36)
def load_kernargs(a):
    a("""s_load_dwordx16 s[16:31], s[0:1], 0
         s_load_dwordx4 s[32:35], s[0:1], 64
         s_load_dwordx2 s[36:37], s[0:1], 80""")

def bufsrc(name):
    tbl = {
        "x": (("ka", P["x"]), S * D * 2), "out": (("ka", P["out"]), S * D * 2),
        "x1": (("ws", P["ws"], WS_X1), S * D * 2), "x2": (("ws", P["ws"], WS_X2), S * D * 2),
        "x3": (("ws", P["ws"], WS_X3), S * D * 2),
        "o": (("ws", P["ws"], WS_O), S * D * 2), "h": (("ws", P["ws"], WS_H), S * F * 2),
        "q": (("ws", P["ws"], WS_Q), S * D * 2), "kv": (("ws", P["ws"], WS_KV), 2 * S * D * 2),
        "qkv": (("ws", P["ws"], WS_Q), 3 * S * D * 2),
        "wqkv": (("ka", P["wqkv"]), D * 3 * D * 2), "wo": (("ka", P["wo"]), D * D * 2),
        "w1": (("ka", P["w1"]), D * F * 2), "w2": (("ka", P["w2"]), F * D * 2),
        "b1": (("ka", P["b1"]), F * 2), "b2": (("ka", P["b2"]), D * 2),
        "wqkv_t": (("ws", P["ws"], WS_WT + WT_OFF["wqkv"]), D * 3 * D * 2), "wo_t": (("ws", P["ws"], WS_WT + WT_OFF["wo"]), D * D * 2),
        "w1_t": (("ws", P["ws"], WS_WT + WT_OFF["w1"]), D * F * 2), "w2_t": (("ws", P["ws"], WS_WT + WT_OFF["w2"]), F * D * 2),
        "wt": (("ws", P["ws"], WS_WT), 24 * MB),
        "cs_qkv": (("ws", P["ws"], WS_CSQ), 3 * D * 4), "cs_w1": (("ws", P["ws"], WS_CS1), F * 4),
    }
    return tbl[name]

def gemm(name, kind, a_buf, res_buf=None, out_buf=None, csmode="calc", raw=False):
    BK = 64
    cfg = {
        "qkv": dict(K=D, N=3 * D, w="wqkv", nct=6, NS=4, a_mode="nat", xm=8, xn=4),
        "w1":  dict(K=D, N=F, w="w1", nct=7, NS=3, a_mode="nat", xm=8, xn=4),
        "wo":  dict(K=D, N=D, w="wo", nct=2, NS=6, a_mode="frag", xm=4, xn=8),
        "w2":  dict(K=F, N=D, w="w2", nct=2, NS=6, a_mode="frag", xm=4, xn=8),
    }[kind]
    rots = eval(os.environ.get("ROT", "{}"))
    cfg["rot"] = rots.get(kind)
    K, N, nct, NS, a_mode, xm, xn = (cfg[k] for k in ("K", "N", "nct", "NS", "a_mode", "xm", "xn"))
    LN = kind in ("qkv", "w1")
    a_mode = "nat" if raw else "frag"
    nst = K // BK
    A_BYTES = 128 * BK * 2
    STAGE = A_BYTES + nct * BK * 64
    lds = STAGE * NS
    assert lds <= 160 * 1024
    k = Kernel(name, 256, 512, lds)
    a = k.a
    L = lambda s: f"L_{name}_{s}"
    if kind == "qkv":
        colstep = 64; cts = [0, 32, 1024, 1056, 2048, 2080]
    elif kind == "w1":
        colstep = 224; cts = [32 * i for i in range(7)]
    else:
        colstep = 64; cts = [0, 32]
    last_slot = (nst - 1) % NS
    free_slot = (last_slot + 1) % NS
    STAT = free_slot * STAGE
    SCR = STAT + 1024

    S_MT, S_NT, S_W = 8, 9, 10
    stamp(a, 0); stamp_real(a, 1)
    load_kernargs(a)
    a(f"""
    s_cmp_ge_u32 s2, 256
    s_cbranch_scc1 {L('end')}
    s_and_b32 s4, s2, 7
    s_lshr_b32 s5, s2, 3
    s_and_b32 s6, s4, {16 // xn - 1}
    s_lshr_b32 s7, s4, {int(math.log2(16 // xn))}
    s_mul_i32 s{S_NT}, s6, {xn}
    s_and_b32 s6, s5, {xn - 1}
    s_add_u32 s{S_NT}, s{S_NT}, s6
    s_mul_i32 s{S_MT}, s7, {xm}
    s_lshr_b32 s6, s5, {int(math.log2(xn))}
    s_add_u32 s{S_MT}, s{S_MT}, s6
    v_lshrrev_b32 v1, 6, v0
    v_and_b32 v0, 63, v0
    v_readfirstlane_b32 s{S_W}, v1
    s_waitcnt lgkmcnt(0)
    s_cmp_lt_u32 s{S_W}, 4
    s_cbranch_scc1 {L('compute')}
    """)
    src, size = bufsrc(a_buf); srd(a, 40, src, size)
    src, size = bufsrc(cfg["w"] + ("" if raw else "_t")); srd(a, 44, src, size)
    S_A, S_WK, S_SLOT, S_CNT, S_RD = 48, 49, 50, 51, 52
    a(f"s_sub_u32 s{S_W}, s{S_W}, 4")
    VX = 8
    VW = 12
    if a_mode == "nat":
        a(f"""
        s_lshl_b32 s4, s{S_MT}, 7
        s_lshl_b32 s5, s{S_W}, 5
        s_add_u32 s4, s4, s5
        s_mul_i32 s{S_A}, s4, {K * 2}
        v_lshrrev_b32 v2, 3, v0
        v_mul_u32_u24 v2, {K * 2}, v2
        v_and_b32 v3, 7, v0
        v_lshrrev_b32 v4, 4, v0
        v_xor_b32 v3, v3, v4
        v_lshl_add_u32 v{VX}, v3, 4, v2
        v_xor_b32 v3, 4, v3
        v_lshl_add_u32 v{VX+1}, v3, 4, v2
        v_add_u32 v{VX+1}, {8 * K * 2}, v{VX+1}
        v_add_u32 v{VX+2}, {16 * K * 2}, v{VX}
        v_add_u32 v{VX+3}, {16 * K * 2}, v{VX+1}
        """)
        a_step = BK * 2
    else:
        a(f"""
        s_lshl_b32 s4, s{S_MT}, 2
        s_add_u32 s4, s4, s{S_W}
        s_mul_i32 s{S_A}, s4, {K // 16 * 1024}
        v_lshlrev_b32 v{VX}, 4, v0
        v_add_u32 v{VX+1}, 1024, v{VX}
        v_add_u32 v{VX+2}, 2048, v{VX}
        v_add_u32 v{VX+3}, 3072, v{VX}
        """)
        a_step = BK // 16 * 1024
    if raw:
        a(f"""
        s_mul_i32 s{S_WK}, s{S_W}, {16 * N * 2}
        s_mul_i32 s4, s{S_NT}, {colstep * 2}
        s_add_u32 s{S_WK}, s{S_WK}, s4
        v_lshrrev_b32 v2, 2, v0
        v_mul_u32_u24 v2, {N * 2}, v2
        v_and_b32 v3, 3, v0
        v_lshl_add_u32 v{VW}, v3, 4, v2
        """)
        for c in range(1, nct):
            a(f"v_add_u32 v{VW+c}, {cts[c] * 2}, v{VW}")
        w_step = BK * N * 2
        a(f"s_lshl_b32 s6, s{S_W}, 10")
        w_piece = BK * 64
    else:
        a(f"""
        s_mul_i32 s{S_WK}, s{S_NT}, {K // 16 * nct * 1024}
        s_mul_i32 s6, s{S_W}, {nct * 1024}
        s_add_u32 s{S_WK}, s{S_WK}, s6
        v_lshlrev_b32 v{VW}, 4, v0
        """)
        for c in range(1, nct):
            a(f"v_add_u32 v{VW+c}, {c * 1024}, v{VW}")
        w_step = 4 * nct * 1024
        w_piece = 1024
    a(f"""
    s_lshl_b32 s5, s{S_W}, 12
    s_add_u32 s6, s6, {A_BYTES}
    s_mov_b32 s{S_SLOT}, 0
    """)
    PW = 4 + nct
    S_KS, S_A0, S_W0 = 53, 54, 55
    ROT = cfg["rot"]
    a(f"s_mov_b32 s{S_A0}, s{S_A}\ns_mov_b32 s{S_W0}, s{S_WK}")
    if ROT:
        a(f"""
        s_lshr_b32 s4, s2, 3
        s_mul_i32 s4, s4, {ROT[0]}
        s_lshr_b32 s{S_KS}, s4, {ROT[1]}
        s_mul_i32 s4, s{S_KS}, {a_step}
        s_add_u32 s{S_A}, s{S_A}, s4
        s_mul_i32 s4, s{S_KS}, {w_step}
        s_add_u32 s{S_WK}, s{S_WK}, s4
        """)
        assert (31 * ROT[0]) >> ROT[1] < nst
    def issue(fill=()):
        fill = list(fill)
        per = -(-len(fill) // PW) if fill else 0
        n = [0]
        def after():
            for x in fill[n[0] * per:(n[0] + 1) * per]: a(x)
            n[0] += 1
        a(f"s_add_u32 s7, s{S_SLOT}, s5")
        for i in range(4):
            a(f"s_add_u32 m0, s7, {i * 1024}\nbuffer_load_dwordx4 v{VX+i}, s[40:43], s{S_A} offen lds")
            after()
        a(f"s_add_u32 s7, s{S_SLOT}, s6")
        for c in range(nct):
            a(f"s_add_u32 m0, s7, {c * w_piece}\nbuffer_load_dwordx4 v{VW+c}, s[44:47], s{S_WK} offen lds")
            after()
        a(f"""
        s_add_u32 s{S_A}, s{S_A}, {a_step}
        s_add_u32 s{S_WK}, s{S_WK}, {w_step}
        s_add_u32 s{S_SLOT}, s{S_SLOT}, {STAGE}
        s_cmp_eq_u32 s{S_SLOT}, {STAGE * NS}
        s_cselect_b32 s{S_SLOT}, 0, s{S_SLOT}
        """)
        if ROT:
            a(f"""
            s_add_u32 s{S_KS}, s{S_KS}, 1
            s_cmp_eq_u32 s{S_KS}, {nst}
            s_cselect_b32 s{S_A}, s{S_A0}, s{S_A}
            s_cselect_b32 s{S_WK}, s{S_W0}, s{S_WK}
            """)
    for _ in range(NS - 1):
        issue()
    VSUM, VSQ, VD, VRA, VONE = 24, 28, 32, 48, 49
    if LN:
        for i in range(4):
            a(f"v_mov_b32 v{VSUM+i}, 0\nv_mov_b32 v{VSQ+i}, 0")
        a(f"v_lshlrev_b32 v2, 4, v0\nv_add_u32 v2, s5, v2\ns_mov_b32 s{S_RD}, 0")
    XF = os.environ.get("XF", "")
    if "ldprio" in XF: a("s_setprio 2")
    def stats_reads():
        if not LN or "nostats" in XF: return
        a(f"v_add_u32 v{VRA}, s{S_RD}, v2")
        for i in range(4):
            a(f"ds_read_b128 {vr(VD+4*i, 4)}, v{VRA} offset:{i * 1024}")
        a(f"""
        s_add_u32 s{S_RD}, s{S_RD}, {STAGE}
        s_cmp_eq_u32 s{S_RD}, {STAGE * NS}
        s_cselect_b32 s{S_RD}, 0, s{S_RD}
        """)
    def stats_valu():
        out = []
        if not LN or "nostats" in XF: return out
        for i in range(4):
            out.append(f"s_waitcnt lgkmcnt({3 - i})")
            for j in range(4):
                d = VD + 4 * i + j
                lo, hi = VONE + 1 + 2 * (j & 1), VONE + 2 + 2 * (j & 1)
                out += [f"v_lshlrev_b32 v{lo}, 16, v{d}", f"v_and_b32 v{hi}, 0xffff0000, v{d}",
                        f"v_add_f32 v{VSUM+i}, v{VSUM+i}, v{lo}", f"v_fmac_f32 v{VSQ+i}, v{lo}, v{lo}",
                        f"v_add_f32 v{VSUM+i}, v{VSUM+i}, v{hi}", f"v_fmac_f32 v{VSQ+i}, v{hi}, v{hi}"]
        return out
    nsteady = nst - (NS - 1)
    a(f"s_mov_b32 s{S_CNT}, {nsteady}")
    a.label(L("ld_loop"))
    a(f"s_waitcnt vmcnt({(NS - 2) * PW})\ns_barrier")
    stats_reads()
    issue(stats_valu())
    a(f"s_sub_u32 s{S_CNT}, s{S_CNT}, 1\ns_cmp_lg_u32 s{S_CNT}, 0\ns_cbranch_scc1 {L('ld_loop')}")
    for t in range(NS - 1):
        a(f"s_waitcnt vmcnt({(NS - 2 - t) * PW})\ns_barrier")
        stats_reads()
        for x in stats_valu(): a(x)
    if LN:
        def finish(m, var, r1, t, off):
            a(f"""
            v_mul_f32 v{m}, {f32(1.0 / K)}, v{m}
            v_mul_f32 v{var}, {f32(1.0 / K)}, v{var}
            v_fma_f32 v{var}, -v{m}, v{m}, v{var}
            v_max_f32 v{var}, 0, v{var}
            v_add_f32 v{t}, {f32(EPS)}, v{var}
            v_rsq_f32 v{r1}, v{t}
            """)
            if kind == "w1":
                a(f"""
                v_mul_f32 v{t}, v{r1}, v{r1}
                v_mul_f32 v{t}, v{t}, v{var}
                v_add_f32 v{t}, {f32(EPS)}, v{t}
                v_rsq_f32 v{t}, v{t}
                v_mul_f32 v{r1}, v{r1}, v{t}
                """)
            a(f"""
            v_mul_f32 v{m}, v{m}, v{r1}
            v_sub_f32 v{m}, 0, v{m}
            ds_write_b32 v3, v{r1} offset:{off}
            ds_write_b32 v3, v{m} offset:{512 + off}
            """)
        regs = list(range(VSUM, VSUM + 4)) + list(range(VSQ, VSQ + 4))
        if a_mode == "nat":
            for mode in ("quad_perm:[1,0,3,2]", "quad_perm:[2,3,0,1]", "row_half_mirror"):
                for r in regs:
                    a(f"v_add_f32_dpp v{r}, v{r}, v{r} {mode} row_mask:0xf bank_mask:0xf")
            a(f"""
            v_lshrrev_b32 v3, 3, v0
            v_lshlrev_b32 v3, 2, v3
            s_lshl_b32 s4, s{S_W}, 7
            s_add_u32 s4, s4, {STAT}
            v_add_u32 v3, s4, v3
            """)
            for i in range(4):
                finish(VSUM + i, VSQ + i, VD + i, VD + 4 + i, i * 32)
        else:
            for b in (VSUM, VSQ):
                a(f"""
                v_add_f32 v{b}, v{b}, v{b+1}
                v_add_f32 v{b+2}, v{b+2}, v{b+3}
                v_add_f32 v{b}, v{b}, v{b+2}
                v_mov_b32 v{b+1}, v{b}
                v_permlane32_swap_b32 v{b}, v{b+1}
                v_add_f32 v{b}, v{b}, v{b+1}
                """)
            a(f"""
            v_and_b32 v3, 31, v0
            v_lshlrev_b32 v3, 2, v3
            s_lshl_b32 s4, s{S_W}, 7
            s_add_u32 s4, s4, {STAT}
            v_add_u32 v3, s4, v3
            """)
            finish(VSUM, VSQ, VD, VD + 4, 0)
        a("s_waitcnt lgkmcnt(0)\ns_barrier")
    a(f"s_branch {L('end')}")

    a.label(L("compute"))
    S_TP, S_FP, S_CS = 11, 12, 13
    a(f"s_and_b32 s{S_TP}, s{S_W}, 1\ns_lshr_b32 s{S_FP}, s{S_W}, 1")
    if kind == "qkv":
        nw = 3; tiles = [(f, t) for f in range(3) for t in range(2)]
    elif kind == "w1":
        nw = 4; tiles = [(f, t) for f in range(3) for t in range(2)] + [(3, 0)]
    else:
        nw = 1; tiles = [(0, 0), (0, 1)]
    r = 2
    VT = r; r += 6
    VXB = r; r += 8
    VXA = r; r += 8
    VWB = r; r += 2
    VWA = r; r += 2
    VCS = r; r += 4
    VBIAS = r; r += 4
    r = (r + 3) // 4 * 4
    CALC = LN and csmode == "calc"
    if CALC:
        VSEL = r; r += 4
        VCA = r; r += 4 * nw
    FR = []
    for s_ in range(2):
        FR.append(dict(x=[r, r + 4], w=[r + 8 + 4 * i for i in range(nw)]))
        r += 8 + 4 * nw
    ACC = {}
    for tl in tiles:
        ACC[tl] = r; r += 16
    VEP = r
    a(f"""
    v_and_b32 v{VT}, 31, v0
    v_lshrrev_b32 v{VT+1}, 5, v0
    """)
    a(f"s_lshl_b32 s4, s{S_TP}, 13")
    if kind == "w1":
        a(f"s_lshl_b32 s5, s{S_FP}, 12\ns_add_u32 s6, s4, s5\ns_xor_b32 s5, s5, 4096\ns_add_u32 s7, s4, s5")
    else:
        a(f"s_mov_b32 s6, s4\ns_add_u32 s7, s4, 4096")
    if a_mode == "nat":
        a(f"""
        v_lshrrev_b32 v{VT+2}, 1, v{VT}
        v_and_b32 v{VT+2}, 7, v{VT+2}
        v_xor_b32 v{VT+2}, v{VT+2}, v{VT+1}
        v_lshlrev_b32 v{VT+2}, 4, v{VT+2}
        v_lshl_add_u32 v{VT+2}, v{VT}, 7, v{VT+2}
        """)
        for ks in range(4):
            a(f"v_xor_b32 v{VT+3}, {ks * 32}, v{VT+2}")
            a(f"v_add_u32 v{VXB+ks}, s6, v{VT+3}\nv_add_u32 v{VXB+4+ks}, s7, v{VT+3}")
        nxa = 8
    else:
        a(f"""
        v_lshlrev_b32 v{VT+2}, 4, v0
        v_add_u32 v{VXB}, s6, v{VT+2}
        v_add_u32 v{VXB+1}, s7, v{VT+2}
        """)
        nxa = 2
    if raw:
        a(f"""
        v_lshlrev_b32 v{VT+2}, 9, v{VT+1}
        v_bfe_u32 v{VT+3}, v0, 2, 2
        v_lshl_add_u32 v{VT+2}, v{VT+3}, 6, v{VT+2}
        v_bfe_u32 v{VT+3}, v0, 4, 1
        v_lshl_add_u32 v{VT+2}, v{VT+3}, 5, v{VT+2}
        v_and_b32 v{VT+3}, 3, v0
        v_lshl_add_u32 v{VT+2}, v{VT+3}, 3, v{VT+2}
        """)
        CTB = BK * 64; KSB = 1024
    else:
        a(f"v_lshlrev_b32 v{VT+2}, 4, v0")
        CTB = 1024; KSB = nct * 1024
    if kind == "qkv":
        a(f"s_mul_i32 s4, s{S_FP}, {CTB}"); wimm = [0, 2 * CTB, 4 * CTB]; wreg = [0, 0, 0]; nwa = 1
    elif kind == "w1":
        a(f"s_mul_i32 s4, s{S_FP}, {3 * CTB}"); wimm = [0, CTB, 2 * CTB, 0]; wreg = [0, 0, 0, 1]; nwa = 2
        a(f"v_add_u32 v{VWB+1}, {A_BYTES + 6 * CTB}, v{VT+2}")
    else:
        a(f"s_mul_i32 s4, s{S_FP}, {CTB}"); wimm = [0]; wreg = [0]; nwa = 1
    a(f"s_add_u32 s4, s4, {A_BYTES}\nv_add_u32 v{VWB}, s4, v{VT+2}")
    for tl in tiles:
        for i in range(16):
            a(f"v_mov_b32 v{ACC[tl]+i}, 0")
    if LN:
        if kind == "qkv":
            a(f"s_lshl_b32 s4, s{S_NT}, 8\ns_lshl_b32 s5, s{S_FP}, 7\ns_add_u32 s56, s4, s5")
            a("s_add_u32 s57, s56, 4096\ns_add_u32 s58, s56, 8192")
        else:
            a(f"s_mul_i32 s4, s{S_NT}, 896\ns_mul_i32 s5, s{S_FP}, 384\ns_add_u32 s56, s4, s5")
            a("s_add_u32 s57, s56, 128\ns_add_u32 s58, s56, 256\ns_add_u32 s59, s4, 768")
        src, size = bufsrc("cs_" + kind); srd(a, 44, src, size)
    if CALC:
        for i in range(4 * nw):
            a(f"v_mov_b32 v{VCA+i}, 0")
        a(f"""
        v_lshrrev_b32 v{VT+2}, 4, v0
        v_xor_b32 v{VT+2}, v{VT+2}, v0
        v_and_b32 v{VT+2}, 1, v{VT+2}
        v_cmp_eq_u32 vcc, 0, v{VT+2}
        v_mov_b32 v{VT+3}, 0x3f803f80
        v_cndmask_b32 v{VSEL}, 0, v{VT+3}, vcc
        v_mov_b32 v{VSEL+1}, v{VSEL}
        v_mov_b32 v{VSEL+2}, v{VSEL}
        v_mov_b32 v{VSEL+3}, v{VSEL}
        s_mov_b32 s4, s{S_TP}
        s_mov_b32 s5, 0
        s_mov_b64 vcc, s[4:5]
        """)
    elif LN:
        a(f"v_lshlrev_b32 v{VT+2}, 2, v{VT}")
        for f in range(nw):
            a(f"buffer_load_dword v{VCS+f}, v{VT+2}, s[44:47], s{56+f} offen")
    if kind == "qkv":
        pass
    elif kind == "w1":
        src, size = bufsrc("b1"); srd(a, 40, src, size)
        a(f"""
        s_mul_i32 s4, s{S_NT}, 448
        s_mul_i32 s5, s{S_FP}, 192
        s_add_u32 s5, s5, s4
        s_add_u32 s4, s4, 384
        v_lshlrev_b32 v{VT+2}, 1, v{VT}
        buffer_load_ushort v{VBIAS}, v{VT+2}, s[40:43], s5 offen
        buffer_load_ushort v{VBIAS+1}, v{VT+2}, s[40:43], s5 offen offset:64
        buffer_load_ushort v{VBIAS+2}, v{VT+2}, s[40:43], s5 offen offset:128
        buffer_load_ushort v{VBIAS+3}, v{VT+2}, s[40:43], s4 offen
        """)
    else:
        src, size = bufsrc(res_buf); srd(a, 40, src, size)
        VRES = VEP; VB2 = VEP + 16; VOA = VEP + 24; VFA = VEP + 25
        a(f"""
        s_lshl_b32 s4, s{S_MT}, 7
        s_lshl_b32 s5, s{S_TP}, 6
        s_add_u32 s4, s4, s5
        s_mul_i32 s4, s4, {D * 2}
        s_lshl_b32 s5, s{S_NT}, 7
        s_lshl_b32 s6, s{S_FP}, 6
        s_add_u32 s5, s5, s6
        s_add_u32 s14, s4, s5
        s_add_u32 s15, s14, {32 * D * 2}
        s_lshl_b32 s6, s5, 5
        s_add_u32 s56, s4, s6
        s_add_u32 s57, s56, 65536
        v_lshlrev_b32 v{VOA}, 11, v{VT}
        v_lshl_add_u32 v{VOA}, v{VT+1}, 3, v{VOA}
        v_lshlrev_b32 v{VFA}, 4, v0
        """)
        for t in range(2):
            if res_buf == "x":
                for i in range(4):
                    a(f"buffer_load_dwordx2 {vr(VRES + 8 * t + 2 * i, 2)}, v{VOA}, s[40:43], s{14+t} offen offset:{16 * i}")
            else:
                for j in range(2):
                    a(f"buffer_load_dwordx4 {vr(VRES + 8 * t + 4 * j, 4)}, v{VFA}, s[40:43], s{56+t} offen offset:{1024 * j}")
        if kind == "w2":
            src, size = bufsrc("b2"); srd(a, 44, src, size)
            a(f"v_lshlrev_b32 v{VT+2}, 3, v{VT+1}")
            for i in range(4):
                a(f"buffer_load_dwordx2 {vr(VB2 + 2 * i, 2)}, v{VT+2}, s[44:47], s5 offen offset:{16 * i}")

    def addr_update():
        for i in range(nxa):
            a(f"v_add_u32 v{VXA+i}, s{S_CS}, v{VXB+i}")
        for i in range(nwa):
            a(f"v_add_u32 v{VWA+i}, s{S_CS}, v{VWB+i}")
        a(f"""
        s_add_u32 s{S_CS}, s{S_CS}, {STAGE}
        s_cmp_eq_u32 s{S_CS}, {STAGE * NS}
        s_cselect_b32 s{S_CS}, 0, s{S_CS}
        """)
    def reads(ks, st):
        out = []
        fr = FR[st]
        def xr(t):
            if a_mode == "nat":
                return f"ds_read_b128 {vr(fr['x'][t], 4)}, v{VXA + 4 * t + ks}"
            return f"ds_read_b128 {vr(fr['x'][t], 4)}, v{VXA + t} offset:{ks * 1024}"
        def wr(f):
            o = wimm[f] + ks * KSB
            if not raw:
                return [f"ds_read_b128 {vr(fr['w'][f], 4)}, v{VWA + wreg[f]} offset:{o}"]
            return [f"ds_read_b64_tr_b16 {vr(fr['w'][f], 2)}, v{VWA + wreg[f]} offset:{o}",
                    f"ds_read_b64_tr_b16 {vr(fr['w'][f] + 2, 2)}, v{VWA + wreg[f]} offset:{o + 256}"]
        out.append(xr(0)); out += wr(0); out.append(xr(1))
        for f in range(1, nw): out += wr(f)
        return out
    def mfmas(st):
        out = []
        fr = FR[st]
        for (f, t) in tiles:
            acc = vr(ACC[(f, t)], 16)
            w_, x_ = vr(fr['w'][f], 4), vr(fr['x'][t], 4)
            if kind == "qkv" and f == 2:
                out.append(f"v_mfma_f32_32x32x16_bf16 {acc}, {x_}, {w_}, {acc}")
            else:
                out.append(f"v_mfma_f32_32x32x16_bf16 {acc}, {w_}, {x_}, {acc}")
        return out
    cnt = [0]
    fifo = []
    def emit_read(x):
        a(x)
        d = x.split()[1].rstrip(",")
        fifo.append(int(d[2:].split(":")[0]))
    def need_regs(regs):
        last = -1
        for i_, d in enumerate(fifo):
            if d in regs: last = i_
        if last >= 0:
            a(f"s_waitcnt lgkmcnt({min(15, len(fifo) - 1 - last)})")
            del fifo[:last + 1]
    def drain():
        if fifo:
            a("s_waitcnt lgkmcnt(0)"); del fifo[:]
    RPG = int(os.environ.get("RPG", "4" if raw else "2"))
    def step(st, rd):
        fr = FR[st]
        m = mfmas(st); fill = list(rd)
        for i, mm in enumerate(m):
            f, t = tiles[i]
            need_regs({fr['w'][f], fr['w'][f] + 2, fr['x'][t]})
            a(mm)
            for x in fill[i * RPG:(i + 1) * RPG]: emit_read(x)
        if CALC:
            cnt[0] += 1
            lab = L(f"cs{cnt[0]}")
            a(f"s_cbranch_vcc{'nz' if st == 0 else 'z'} {lab}")
            for f in range(nw):
                a(f"v_mfma_f32_16x16x32_bf16 {vr(VCA + 4 * f, 4)}, {vr(fr['w'][f], 4)}, {vr(VSEL, 4)}, {vr(VCA + 4 * f, 4)}")
            a.label(lab)
    a(f"s_mov_b32 s{S_CS}, 0\ns_mov_b32 s{S_CNT}, {nst - 1}")
    addr_update()
    stamp(a, 2)
    a("s_barrier")
    stamp(a, 3)
    if DIAG: a("s_waitcnt lgkmcnt(0)")
    for x in reads(0, 0): emit_read(x)
    def stage(last):
        for ks in range(3):
            step(ks & 1, reads(ks + 1, (ks + 1) & 1))
        if not last:
            drain()
            addr_update()
            a("s_barrier")
            step(1, reads(0, 0))
        else:
            step(1, [])
    a.label(L("c_loop"))
    stage(False)
    a(f"s_sub_u32 s{S_CNT}, s{S_CNT}, 1\ns_cmp_lg_u32 s{S_CNT}, 0\ns_cbranch_scc1 {L('c_loop')}")
    stage(True)
    stamp(a, 4)

    T0, T1 = VT, VT + 1
    if LN:
        a(f"""
        s_lshl_b32 s4, s{S_W}, 11
        s_add_u32 s4, s4, {SCR}
        v_lshlrev_b32 v{VT+2}, 2, v{T0}
        v_add_u32 v{VT+2}, s4, v{VT+2}
        v_lshlrev_b32 v{VT+3}, 4, v{T1}
        v_add_u32 v{VT+3}, s4, v{VT+3}
        """)
        if CALC:
            a(f"""
            v_and_b32 v{VT+4}, 1, v0
            v_lshlrev_b32 v{VT+4}, 6, v{VT+4}
            v_lshrrev_b32 v{VT+5}, 4, v0
            v_lshl_add_u32 v{VT+4}, v{VT+5}, 4, v{VT+4}
            v_add_u32 v{VT+4}, s4, v{VT+4}
            v_xor_b32 v{VT+5}, 2048, v{VT+2}
            """)
            assert SCR % 1024 == 0 and (SCR // 2048) * 2048 + 1024 == SCR or True
            for f in range(nw):
                a(f"ds_write_b128 v{VT+4}, {vr(VCA + 4 * f, 4)} offset:{1024 + f * 128}")
        a("s_waitcnt vmcnt(0)")
        if kind == "w1":
            for f in range(nw):
                a(f"v_lshlrev_b32 v{VBIAS+f}, 16, v{VBIAS+f}")
                a(f"ds_write_b32 v{VT+2}, v{VBIAS+f} offset:{512 + f * 128}")
        a("s_waitcnt lgkmcnt(0)\ns_barrier")
        if CALC:
            a(f"""
            s_xor_b32 s5, s{S_W}, 1
            s_lshl_b32 s5, s5, 11
            s_add_u32 s5, s5, {SCR}
            v_lshlrev_b32 v{VT+5}, 2, v{T0}
            v_add_u32 v{VT+4}, s5, v{VT+5}
            """)
            for f in range(nw):
                a(f"ds_read_b32 v{VCS+f}, v{VT+2} offset:{1024 + f * 128}")
                a(f"ds_read_b32 v{VCA+f}, v{VT+4} offset:{1024 + f * 128}")
            a("s_waitcnt lgkmcnt(0)")
            for f in range(nw):
                a(f"v_add_f32 v{VCS+f}, v{VCS+f}, v{VCA+f}")
            a(f"""
            s_or_b32 s5, s{S_MT}, s{S_TP}
            s_cmp_lg_u32 s5, 0
            s_cbranch_scc1 {L('nocs')}
            """)
            for f in range(nw):
                a(f"buffer_store_dword v{VCS+f}, v{VT+5}, s[44:47], s{56+f} offen")
            a.label(L("nocs"))
        for f in range(nw):
            a(f"ds_write_b32 v{VT+2}, v{VCS+f} offset:{f * 128}")
        a("s_waitcnt lgkmcnt(0)")
    FREE = FR[0]['x'][0]
    if kind == "qkv":
        src, size = bufsrc("qkv"); srd(a, 40, src, size)
        a(f"""
        s_lshl_b32 s4, s{S_NT}, 1
        s_add_u32 s4, s4, s{S_FP}
        s_lshl_b32 s4, s4, 6
        s_lshl_b32 s5, s{S_MT}, 2
        s_add_u32 s4, s4, s5
        s_lshl_b32 s5, s{S_TP}, 1
        s_add_u32 s4, s4, s5
        s_lshl_b32 s14, s4, 11
        s_lshl_b32 s15, s4, 12
        s_add_u32 s15, s15, {WS_KV - WS_Q}
        v_lshlrev_b32 v{VT+4}, 4, v0
        s_lshl_b32 s5, s{S_TP}, 8
        s_add_u32 s5, s5, {STAT}
        v_lshlrev_b32 v{VT+5}, 2, v{T0}
        v_add_u32 v{VT+5}, s5, v{VT+5}
        v_lshlrev_b32 v{VXB}, 4, v{T1}
        v_add_u32 v{VXB}, s5, v{VXB}
        """)
        CSQ, CSK = VEP, VEP + 16
        AB = VEP + 32
        TMP = VEP + 40
        VA_, VB_ = FREE, FREE + 16
        p2 = lambda r_: vr(r_, 2)
        for i in range(4):
            a(f"ds_read_b128 {vr(CSQ + 4 * i, 4)}, v{VT+3} offset:{i * 32}")
            a(f"ds_read_b128 {vr(CSK + 4 * i, 4)}, v{VT+3} offset:{128 + i * 32}")
        for t in range(2):
            a(f"ds_read_b32 v{AB + 2 * t}, v{VT+5} offset:{t * 128}")
            a(f"ds_read_b32 v{AB + 2 * t + 1}, v{VT+5} offset:{512 + t * 128}")
        a("s_waitcnt lgkmcnt(0)")
        for i in range(4):
            a(f"v_mul_f32 v{AB + 4 + i}, {f32(QSCALE)}, v{AB + i}")
        def store_tile(acc, soff, off):
            for i in range(8):
                a(f"v_cvt_pk_bf16_f32 v{acc + i}, v{TMP + 2 * i}, v{TMP + 2 * i + 1}")
            a(f"buffer_store_dwordx4 {vr(acc, 4)}, v{VT+4}, s[40:43], s{soff} offen offset:{off}{ST}")
            a(f"buffer_store_dwordx4 {vr(acc + 4, 4)}, v{VT+4}, s[40:43], s{soff} offen offset:{off + 1024}{ST}")
        for t in range(2):
            for i in range(4):
                a(f"ds_read_b128 {vr(VA_ + 4 * i, 4)}, v{VXB} offset:{t * 128 + i * 32}")
                a(f"ds_read_b128 {vr(VB_ + 4 * i, 4)}, v{VXB} offset:{512 + t * 128 + i * 32}")
            for f, cs, ab in ((0, CSQ, AB + 4 + 2 * t), (1, CSK, AB + 2 * t)):
                acc = ACC[(f, t)]
                for i in range(0, 16, 2):
                    a(f"v_pk_mul_f32 {p2(TMP + i)}, {p2(cs + i)}, {p2(ab)} op_sel:[0,1]")
                for i in range(0, 16, 2):
                    a(f"v_pk_fma_f32 {p2(TMP + i)}, {p2(acc + i)}, {p2(ab)}, {p2(TMP + i)} op_sel_hi:[1,0,1]")
                if f == 0: store_tile(acc, 14, t * 2048)
                else: store_tile(acc, 15, 0)
            a("s_waitcnt lgkmcnt(0)")
            acc = ACC[(2, t)]
            assert (VCS + 2) % 2 == 0
            for i in range(0, 16, 2):
                a(f"v_pk_mul_f32 {p2(TMP + i)}, {p2(VB_ + i)}, {p2(VCS + 2)} op_sel_hi:[1,0]")
            for i in range(0, 16, 2):
                a(f"v_pk_fma_f32 {p2(TMP + i)}, {p2(acc + i)}, {p2(VA_ + i)}, {p2(TMP + i)}")
            store_tile(acc, 15, 2048)
            if t == 0:
                a("s_add_u32 s15, s15, 4096")
    elif kind == "w1":
        src, size = bufsrc("h"); srd(a, 40, src, size)
        a(f"""
        s_lshl_b32 s4, s{S_MT}, 2
        s_lshl_b32 s5, s{S_TP}, 1
        s_add_u32 s4, s4, s5
        s_add_u32 s6, s4, s{S_FP}
        s_xor_b32 s7, s6, 1
        s_mul_i32 s6, s6, {F // 16 * 1024}
        s_mul_i32 s7, s7, {F // 16 * 1024}
        s_mul_i32 s4, s{S_NT}, {14 * 1024}
        s_add_u32 s6, s6, s4
        s_add_u32 s7, s7, s4
        s_add_u32 s13, s6, {12 * 1024}
        s_mul_i32 s4, s{S_FP}, {6 * 1024}
        s_add_u32 s14, s6, s4
        s_add_u32 s15, s7, s4
        v_lshlrev_b32 v{VT+4}, 4, v0
        s_lshl_b32 s5, s{S_TP}, 8
        s_add_u32 s5, s5, {STAT}
        s_lshl_b32 s4, s{S_FP}, 7
        s_add_u32 s6, s5, s4
        s_xor_b32 s4, s4, 128
        s_add_u32 s7, s5, s4
        v_lshlrev_b32 v{VT+5}, 2, v{T0}
        v_add_u32 v{VXB}, s6, v{VT+5}
        v_add_u32 v{VXB+1}, s7, v{VT+5}
        """)
        AB = VEP; KC0 = VEP + 4; KC1 = VEP + 6; KONE = VEP + 8; T2 = VEP + 12
        CS_, BI_ = FREE, FREE + 16
        p2 = lambda r_: vr(r_, 2)
        for t in range(2):
            a(f"ds_read_b32 v{AB + 2 * t}, v{VXB + t}")
            a(f"ds_read_b32 v{AB + 2 * t + 1}, v{VXB + t} offset:512")
        C0 = -2.0 * math.log2(math.e) * math.sqrt(2.0 / math.pi)
        C1 = C0 * 0.044715
        for i in range(2):
            a(f"v_mov_b32 v{KC0+i}, {f32(C0)}\nv_mov_b32 v{KC1+i}, {f32(C1)}\nv_mov_b32 v{KONE+i}, 1.0")
        for f in range(4):
            for i in range(4):
                a(f"ds_read_b128 {vr(CS_ + 4 * i, 4)}, v{VT+3} offset:{f * 128 + i * 32}")
                a(f"ds_read_b128 {vr(BI_ + 4 * i, 4)}, v{VT+3} offset:{512 + f * 128 + i * 32}")
            a("s_waitcnt lgkmcnt(0)")
            for t in range(2):
                if (f, t) not in ACC: continue
                acc = ACC[(f, t)]; ab = AB + 2 * t
                E = range(0, 16, 2)
                for i in E:
                    a(f"v_pk_fma_f32 {p2(T2 + i)}, {p2(CS_ + i)}, {p2(ab)}, {p2(BI_ + i)} op_sel:[0,1,0]")
                for i in E:
                    a(f"v_pk_fma_f32 {p2(acc + i)}, {p2(acc + i)}, {p2(ab)}, {p2(T2 + i)} op_sel_hi:[1,0,1]")
                for i in E:
                    a(f"v_pk_mul_f32 {p2(T2 + i)}, {p2(acc + i)}, {p2(acc + i)}")
                for i in E:
                    a(f"v_pk_fma_f32 {p2(T2 + i)}, {p2(T2 + i)}, {p2(KC1)}, {p2(KC0)}")
                for i in E:
                    a(f"v_pk_mul_f32 {p2(T2 + i)}, {p2(T2 + i)}, {p2(acc + i)}")
                for i in range(16):
                    a(f"v_exp_f32 v{T2 + i}, v{T2 + i}")
                for i in E:
                    a(f"v_pk_add_f32 {p2(T2 + i)}, {p2(T2 + i)}, {p2(KONE)}")
                for i in range(16):
                    a(f"v_rcp_f32 v{T2 + i}, v{T2 + i}")
                for i in E:
                    a(f"v_pk_mul_f32 {p2(T2 + i)}, {p2(acc + i)}, {p2(T2 + i)}")
                for i in range(8):
                    a(f"v_cvt_pk_bf16_f32 v{acc + i}, v{T2 + 2 * i}, v{T2 + 2 * i + 1}")
                if f < 3:
                    so, off = 14 + t, f * 2048
                    if off + 1024 > 4095:
                        a(f"s_add_u32 s6, s{so}, {off}"); so, off = 6, 0
                else:
                    so, off = 13, 0
                a(f"buffer_store_dwordx4 {vr(acc, 4)}, v{VT+4}, s[40:43], s{so} offen offset:{off}{ST}")
                a(f"buffer_store_dwordx4 {vr(acc + 4, 4)}, v{VT+4}, s[40:43], s{so} offen offset:{off + 1024}{ST}")
    else:
        src, size = bufsrc(out_buf); srd(a, 48, src, size)
        TMP = FREE
        a("s_waitcnt vmcnt(0)")
        for t in range(2):
            acc = ACC[(0, t)]
            for i in range(8):
                rsrc = VRES + 8 * t + i
                a(f"v_lshlrev_b32 v{VT+2}, 16, v{rsrc}\nv_and_b32 v{VT+3}, 0xffff0000, v{rsrc}")
                a(f"v_add_f32 v{acc + 2 * i}, v{acc + 2 * i}, v{VT+2}\nv_add_f32 v{acc + 2 * i + 1}, v{acc + 2 * i + 1}, v{VT+3}")
                if kind == "w2":
                    bs = VB2 + i
                    a(f"v_lshlrev_b32 v{VT+2}, 16, v{bs}\nv_and_b32 v{VT+3}, 0xffff0000, v{bs}")
                    a(f"v_add_f32 v{acc + 2 * i}, v{acc + 2 * i}, v{VT+2}\nv_add_f32 v{acc + 2 * i + 1}, v{acc + 2 * i + 1}, v{VT+3}")
                a(f"v_cvt_pk_bf16_f32 v{TMP + 8 * t + i}, v{acc + 2 * i}, v{acc + 2 * i + 1}")
            pk = TMP + 8 * t
            if out_buf == "out":
                if t == 0:
                    a(f"v_lshl_add_u32 v{VOA}, v{VT+1}, 3, v{VOA}")
                for j in range(2):
                    a(f"v_permlane32_swap_b32 v{pk + 4 * j}, v{pk + 4 * j + 2}")
                    a(f"v_permlane32_swap_b32 v{pk + 4 * j + 1}, v{pk + 4 * j + 3}")
                    a(f"buffer_store_dwordx4 {vr(pk + 4 * j, 4)}, v{VOA}, s[48:51], s{14+t} offen offset:{32 * j}")
            else:
                for j in range(2):
                    a(f"buffer_store_dwordx4 {vr(pk + 4 * j, 4)}, v{VFA}, s[48:51], s{56+t} offen offset:{1024 * j}{ST}")
    stamp(a, 5)
    stamp_flush(a, 6, S_W, L("end"))
    a.label(L("end"))
    a("s_endpgm")
    return k

def attn(name, retile=False):
    CT = 8; NS = 3; CH = CT * 4096; NCH = 64 // CT
    SCR = CH * NS
    LX = SCR + 8 * 4096
    k = Kernel(name, 256, 512, LX + 2048)
    a = k.a
    L = lambda s: f"L_{name}_{s}"
    stamp(a, 0); stamp_real(a, 1)
    load_kernargs(a)
    S_W, S_HD, S_QT, S_G, S_SLOT, S_CNT, S_RD, S_KH = 8, 9, 10, 11, 12, 13, 14, 15
    a(f"""
    s_cmp_ge_u32 s2, 256
    s_cbranch_scc1 {L('end')}
    s_and_b32 s4, s2, 7
    s_lshr_b32 s5, s2, 3
    s_lshr_b32 s6, s5, 3
    s_lshl_b32 s{S_HD}, s4, 2
    s_add_u32 s{S_HD}, s{S_HD}, s6
    s_and_b32 s5, s5, 7
    v_lshrrev_b32 v1, 6, v0
    v_and_b32 v0, 63, v0
    v_readfirstlane_b32 s{S_W}, v1
    s_waitcnt lgkmcnt(0)
    s_lshl_b32 s{S_QT}, s5, 3
    s_and_b32 s4, s{S_W}, 3
    s_lshl_b32 s4, s4, 1
    s_add_u32 s{S_QT}, s{S_QT}, s4
    s_lshr_b32 s{S_KH}, s{S_W}, 2
    """)
    src, size = bufsrc("kv"); srd(a, 44, src, size)
    VL16, VCUR, VNXT, VT = 2, 3, 4, 5
    Q = [8, 16]; KF = 24; VF = 32; SEL = 40; LA = [44, 48]; PP = 52
    VRA, VRT, VB = 60, 61, 62
    NEG = [64, 80]; SS = [96, 112]; O = [128, 144]; TMP = 160; RT = 176
    a(f"""
    v_lshlrev_b32 v{VL16}, 4, v0
    s_lshl_b32 s{S_G}, s{S_HD}, 18
    s_lshl_b32 s5, s{S_W}, 12
    s_add_u32 s{S_G}, s{S_G}, s5
    s_mov_b32 s{S_SLOT}, s5
    s_add_u32 s6, s5, {CH * NS}
    """)
    def dma(i):
        return f"buffer_load_dwordx4 v{VL16}, s[44:47], s{S_G} offen offset:{1024 * i} lds"
    def dma_adv():
        a(f"""
        s_add_u32 s{S_G}, s{S_G}, {CH}
        s_add_u32 s{S_SLOT}, s{S_SLOT}, {CH}
        s_cmp_eq_u32 s{S_SLOT}, s6
        s_cselect_b32 s{S_SLOT}, s5, s{S_SLOT}
        """)
    a(f"s_mov_b32 m0, s{S_SLOT}")
    for i in range(4): a(dma(i))
    dma_adv()
    src, size = bufsrc("q"); srd(a, 40, src, size)
    a(f"""
    s_lshl_b32 s4, s{S_HD}, 6
    s_add_u32 s4, s4, s{S_QT}
    s_lshl_b32 s4, s4, 11
    buffer_load_dwordx4 {vr(Q[0], 4)}, v{VL16}, s[40:43], s4 offen
    buffer_load_dwordx4 {vr(Q[0] + 4, 4)}, v{VL16}, s[40:43], s4 offen offset:1024
    buffer_load_dwordx4 {vr(Q[1], 4)}, v{VL16}, s[40:43], s4 offen offset:2048
    buffer_load_dwordx4 {vr(Q[1] + 4, 4)}, v{VL16}, s[40:43], s4 offen offset:3072
    s_mov_b32 m0, s{S_SLOT}
    """)
    for i in range(4): a(dma(i))
    dma_adv()
    nyoung = 4
    S_RS, S_RDST, S_RN, S_RV, S_RSTEP = 52, 53, 54, 55, 56
    def rt_decode(r):
        a(f"s_lshl_b32 s4, s2, 3\ns_add_u32 s4, s4, s{S_W}")
        if r == 0:
            a(f"""
            s_lshr_b32 s7, s4, 7
            s_and_b32 s4, s4, 127
            s_mov_b32 s{S_RV}, 1
            s_cmp_lt_u32 s4, 112
            s_cbranch_scc0 {L('r0wo')}
            s_mul_i32 s57, s4, 147
            s_lshr_b32 s57, s57, 10
            s_mul_i32 s58, s57, 7
            s_sub_u32 s58, s4, s58
            """)
            rt_set("w1", F, 7, 64)
            a(f"s_branch {L('r0j')}")
            a.label(L("r0wo"))
            a("s_sub_u32 s4, s4, 112\ns_lshr_b32 s57, s4, 1\ns_and_b32 s58, s4, 1")
            rt_set("wo", D, 2, 64)
            a.label(L("r0j"))
        elif r == 1:
            a(f"""
            s_mov_b32 s{S_RV}, 1
            s_cmp_lt_u32 s4, 1792
            s_cbranch_scc0 {L('r1wo')}
            s_lshr_b32 s7, s4, 5
            s_and_b32 s4, s4, 31
            s_lshr_b32 s57, s4, 1
            s_and_b32 s58, s4, 1
            """)
            rt_set("w2", D, 2, 224)
            a(f"s_branch {L('r1j')}")
            a.label(L("r1wo"))
            a("""
            s_sub_u32 s4, s4, 1792
            s_lshr_b32 s7, s4, 4
            s_and_b32 s4, s4, 15
            s_add_u32 s4, s4, 16
            s_lshr_b32 s57, s4, 1
            s_and_b32 s58, s4, 1
            """)
            rt_set("wo", D, 2, 64)
            a.label(L("r1j"))
        else:
            a(f"""
            s_lshr_b32 s7, s4, 7
            s_and_b32 s4, s4, 127
            s_cmp_lt_u32 s4, 96
            s_cselect_b32 s{S_RV}, 1, 0
            s_min_u32 s4, s4, 95
            s_and_b32 s57, s4, 31
            s_and_b32 s58, s57, 1
            s_lshr_b32 s57, s57, 1
            s_lshr_b32 s59, s4, 5
            s_lshl_b32 s59, s59, 1
            s_add_u32 s58, s58, s59
            """)
            rt_set("wqkv", 3 * D, 6, 64)
    def rt_set(w, N, nct, KG):
        src, size = bufsrc(w); srd(a, 60, src, size)
        a(f"""
        s_mul_i32 s{S_RS}, s7, {64 * N * 2}
        s_lshl_b32 s4, s4, 6
        s_add_u32 s{S_RS}, s{S_RS}, s4
        s_mov_b32 s{S_RN}, {N * 2}
        s_mul_i32 s{S_RDST}, s57, {KG}
        s_lshl_b32 s7, s7, 2
        s_add_u32 s{S_RDST}, s{S_RDST}, s7
        s_mul_i32 s{S_RDST}, s{S_RDST}, {nct}
        s_add_u32 s{S_RDST}, s{S_RDST}, s58
        s_lshl_b32 s{S_RDST}, s{S_RDST}, 10
        s_add_u32 s{S_RDST}, s{S_RDST}, {WT_OFF[w]}
        s_mov_b32 s{S_RSTEP}, {nct * 1024}
        """)
    def rt_issue():
        a(f"""
        v_lshrrev_b32 v{VRA}, 2, v0
        v_mul_lo_u32 v{VRA}, v{VRA}, s{S_RN}
        v_and_b32 v{VB}, 3, v0
        v_lshl_add_u32 v{VRA}, v{VB}, 4, v{VRA}
        s_lshl_b32 s4, s{S_RN}, 4
        s_add_u32 s7, s5, {SCR}
        """)
        for i in range(4):
            a(f"s_add_u32 m0, s7, {i * 1024}\nbuffer_load_dwordx4 v{VRA}, s[60:63], s{S_RS} offen lds")
            if i < 3: a(f"s_add_u32 s{S_RS}, s{S_RS}, s4")
    def rt_finish(lab):
        for i in range(4):
            a(f"ds_read_b64_tr_b16 {vr(RT + 4 * i, 2)}, v{VRT} offset:{i * 1024}")
            a(f"ds_read_b64_tr_b16 {vr(RT + 4 * i + 2, 2)}, v{VRT} offset:{i * 1024 + 512}")
        a(f"s_waitcnt lgkmcnt(0)\ns_cmp_eq_u32 s{S_RV}, 0\ns_cbranch_scc1 {lab}")
        for i in range(4):
            a(f"buffer_store_dwordx4 {vr(RT + 4 * i, 4)}, v{VL16}, s[40:43], s{S_RDST} offen{ST}")
            if i < 3: a(f"s_add_u32 s{S_RDST}, s{S_RDST}, s{S_RSTEP}")
        a.label(lab)
    if retile:
        rt_decode(0); rt_issue(); nyoung += 4
        a(f"""
        v_lshrrev_b32 v{VRT}, 5, v0
        v_lshlrev_b32 v{VRT}, 8, v{VRT}
        v_bfe_u32 v{VB}, v0, 2, 2
        v_lshl_add_u32 v{VRT}, v{VB}, 6, v{VRT}
        v_bfe_u32 v{VB}, v0, 4, 1
        v_lshl_add_u32 v{VRT}, v{VB}, 5, v{VRT}
        v_and_b32 v{VB}, 3, v0
        v_lshl_add_u32 v{VRT}, v{VB}, 3, v{VRT}
        s_add_u32 s4, s5, {SCR}
        v_add_u32 v{VRT}, s4, v{VRT}
        """)
    a(f"""
    v_lshrrev_b32 v{VT}, 2, v0
    v_lshrrev_b32 v{VT+1}, 4, v0
    v_xor_b32 v{VT}, v{VT}, v{VT+1}
    v_and_b32 v{VT}, 1, v{VT}
    v_cmp_eq_u32 vcc, 0, v{VT}
    v_mov_b32 v{VT+1}, 0x3f803f80
    v_cndmask_b32 v{SEL}, 0, v{VT+1}, vcc
    v_mov_b32 v{SEL+1}, v{SEL}
    v_mov_b32 v{SEL+2}, v{SEL}
    v_mov_b32 v{SEL+3}, v{SEL}
    s_lshl_b32 s4, s{S_KH}, 14
    v_add_u32 v{VB+1}, s4, v{VL16}
    v_mov_b32 v{VCUR}, v{VB+1}
    v_add_u32 v{VNXT}, {CH}, v{VB+1}
    s_mov_b32 s{S_RD}, {2 * CH}
    s_mov_b32 s{S_CNT}, 0
    """)
    VBASE = VB + 1
    for x in range(2):
        for i in range(4): a(f"v_mov_b32 v{LA[x]+i}, 0")
        for i in range(16): a(f"v_mov_b32 v{O[x]+i}, 0")
    for i in range(4): a(f"v_mov_b32 v{VF+4+i}, 0\nv_mov_b32 v{PP+4+i}, 0")
    stamp(a, 2)
    a(f"s_waitcnt vmcnt({nyoung})\ns_barrier")
    stamp(a, 3)
    if retile:
        src, size = bufsrc("wt"); srd(a, 40, src, size)
    fifo = []
    def rd(reg, addr, off):
        a(f"ds_read_b128 {vr(reg, 4)}, v{addr} offset:{off}"); fifo.append(reg)
    def need(*regs):
        last = -1
        for i_, d in enumerate(fifo):
            if d in regs: last = i_
        if last >= 0:
            a(f"s_waitcnt lgkmcnt({len(fifo) - 1 - last})"); del fifo[:last + 1]
    def rdK(addr, t): rd(KF, addr, t * 4096); rd(KF + 4, addr, t * 4096 + 1024)
    def rdV(addr, t, j): rd(VF + 4 * j, addr, t * 4096 + 2048 + 1024 * j)
    def QK(x, j, C=None):
        C = C if C is not None else (vr(NEG[x], 16) if j == 0 else vr(SS[x], 16))
        a(f"v_mfma_f32_32x32x16_bf16 {vr(SS[x], 16)}, {vr(KF + 4 * j, 4)}, {vr(Q[x] + 4 * j, 4)}, {C}")
    def PV(x, j): a(f"v_mfma_f32_32x32x16_bf16 {vr(O[x], 16)}, {vr(VF + 4 * j, 4)}, {vr(PP + 4 * j, 4)}, {vr(O[x], 16)}")
    def LL(x, j): a(f"v_mfma_f32_16x16x32_bf16 {vr(LA[x], 4)}, {vr(SEL, 4)}, {vr(PP + 4 * j, 4)}, {vr(LA[x], 4)}")
    def rowmax(dst, s, tmp, extra=None):
        a(f"v_max3_f32 v{dst}, v{s}, v{s+1}, v{s+2}")
        for i in range(3, 15, 2):
            a(f"v_max3_f32 v{dst}, v{dst}, v{s+i}, v{s+i+1}")
        a(f"v_max_f32 v{dst}, v{dst}, v{s+15}\nv_mov_b32 v{tmp}, v{dst}\nv_permlane32_swap_b32 v{dst}, v{tmp}")
        if extra is None: a(f"v_max_f32 v{dst}, v{dst}, v{tmp}")
        else: a(f"v_max3_f32 v{dst}, v{dst}, v{tmp}, v{extra}")
    rdK(VL16, 0)
    need(KF, KF + 4)
    for x in range(2):
        QK(x, 0, "0"); QK(x, 1)
    rdK(VCUR, 0); rdV(VCUR, 0, 0)
    for x in range(2):
        rowmax(VT, SS[x], VT + 1)
        for i in range(16): a(f"v_sub_f32 v{NEG[x]+i}, 0, v{VT}")
    need(KF, KF + 4)
    QK(0, 0); QK(0, 1)
    a(f"v_exp_f32 v{TMP}, v{SS[0]}\nv_exp_f32 v{TMP+1}, v{SS[0]+1}")
    entry = list(fifo)
    a.label(L("loop"))
    NT = CT // 2
    for t in range(NT):
        for x in range(2):
            y = 1 - x
            e = lambda i: a(f"v_exp_f32 v{TMP + i}, v{SS[x] + i}")
            en = lambda i: a(f"v_exp_f32 v{TMP + i}, v{SS[y] + i}")
            c = lambda i: a(f"v_cvt_pk_bf16_f32 v{PP + i}, v{TMP + 2 * i}, v{TMP + 2 * i + 1}")
            naddr, nt_ = (VCUR, t + 1) if t + 1 < NT else (VNXT, 0)
            need(VF + 4)
            PV(y, 1)
            if x == 0: rdV(VCUR, t, 1)
            e(2); e(3); e(4)
            LL(y, 1)
            e(5); c(0); c(1)
            need(KF, KF + 4)
            QK(y, 0)
            e(6); e(7); e(8); c(2)
            QK(y, 1)
            if x == 0:
                if t == NT - 1:
                    a("s_waitcnt vmcnt(0)\ns_barrier")
                    if retile:
                        a(f"s_cmp_ge_u32 s{S_CNT}, 3\ns_cbranch_scc1 {L('rtdone')}")
                        rt_finish(L("rtns"))
                        a(f"s_cmp_eq_u32 s{S_CNT}, 2\ns_cbranch_scc1 {L('rtdone')}")
                        a(f"s_cmp_eq_u32 s{S_CNT}, 1\ns_cbranch_scc1 {L('rt2')}")
                        rt_decode(1)
                        a(f"s_branch {L('rtgo')}")
                        a.label(L("rt2"))
                        rt_decode(2)
                        a.label(L("rtgo"))
                        rt_issue()
                        a.label(L("rtdone"))
                    a(f"""
                    s_cmp_ge_u32 s{S_CNT}, {NCH - 2}
                    s_cbranch_scc1 {L('nd0')}
                    s_mov_b32 m0, s{S_SLOT}
                    {dma(0)}
                    {dma(1)}
                    """)
                    a.label(L("nd0"))
                rdK(naddr, nt_)
            elif t == NT - 1:
                a(f"""
                s_cmp_ge_u32 s{S_CNT}, {NCH - 2}
                s_cbranch_scc1 {L('nd1')}
                {dma(2)}
                {dma(3)}
                """)
                dma_adv()
                a.label(L("nd1"))
            c(3); e(9); e(10); e(11)
            need(VF)
            PV(x, 0)
            if x == 1: rdV(naddr, nt_, 0)
            e(12); e(13); e(14); c(4)
            LL(x, 0)
            e(15); c(5); c(6); c(7); en(0); en(1)
    assert fifo == entry, (fifo, entry)
    a(f"""
    v_mov_b32 v{VCUR}, v{VNXT}
    v_add_u32 v{VNXT}, s{S_RD}, v{VBASE}
    s_add_u32 s{S_RD}, s{S_RD}, {CH}
    s_cmp_eq_u32 s{S_RD}, {CH * NS}
    s_cselect_b32 s{S_RD}, 0, s{S_RD}
    s_add_u32 s{S_CNT}, s{S_CNT}, 1
    s_cmp_lt_u32 s{S_CNT}, {NCH}
    s_cbranch_scc1 {L('loop')}
    s_waitcnt lgkmcnt(0)
    """)
    PV(1, 1); LL(1, 1)
    stamp(a, 4)
    a(f"""
    s_add_u32 s4, s5, {SCR}
    v_add_u32 v{VT}, s4, v{VL16}
    s_xor_b32 s4, s5, {4 * 4096}
    s_add_u32 s4, s4, {SCR}
    v_add_u32 v{VT+1}, s4, v{VL16}
    s_lshl_b32 s4, s{S_W}, 8
    s_add_u32 s4, s4, {LX}
    v_lshl_add_u32 v{VRA}, v0, 2, s4
    v_xor_b32 v{VRT}, 1024, v{VRA}
    s_cmp_eq_u32 s{S_KH}, 0
    s_cbranch_scc0 {L('kh1')}
    """)
    assert LX % 2048 == 0
    for i in range(4): a(f"ds_write_b128 v{VT}, {vr(O[1] + 4 * i, 4)} offset:{i * 1024}")
    a(f"ds_write_b32 v{VRA}, v{LA[1]}\ns_branch {L('khj')}")
    a.label(L("kh1"))
    for i in range(4): a(f"ds_write_b128 v{VT}, {vr(O[0] + 4 * i, 4)} offset:{i * 1024}")
    a(f"ds_write_b32 v{VRA}, v{LA[0]}\ns_waitcnt lgkmcnt(0)")
    for i in range(16): a(f"v_mov_b32 v{O[0]+i}, v{O[1]+i}")
    for i in range(8): a(f"v_mov_b32 v{Q[0]+i}, v{Q[1]+i}")
    a(f"v_mov_b32 v{LA[0]}, v{LA[1]}\nv_mov_b32 v{NEG[0]}, v{NEG[1]}\ns_add_u32 s{S_QT}, s{S_QT}, 1")
    a.label(L("khj"))
    a("s_waitcnt lgkmcnt(0)\ns_barrier")
    for i in range(4): a(f"ds_read_b128 {vr(TMP + 4 * i, 4)}, v{VT+1} offset:{i * 1024}")
    a(f"ds_read_b32 v{VT}, v{VRT}\ns_waitcnt lgkmcnt(0)")
    OO = O[0]; LACC = LA[0]; QQ = Q[0]; SB = SS[1]
    for i in range(16): a(f"v_add_f32 v{OO+i}, v{OO+i}, v{TMP+i}")
    a(f"v_add_f32 v{LACC}, v{LACC}, v{VT}")
    a(f"v_mov_b32 v{VT}, v{LACC}")
    for i in range(0, 16, 2):
        a(f"v_max3_f32 v{VT}, v{VT}, abs(v{OO+i}), abs(v{OO+i+1})")
    a(f"v_mov_b32 v{VT+1}, v{LACC}")
    for i in range(16):
        a(f"v_add_f32 v{VT+1}, v{VT+1}, v{OO+i}")
    a(f"""
    s_mov_b32 s4, {f32(2.0 ** 60)}
    v_cmp_nle_f32 vcc, v{VT}, s4
    v_cmp_u_f32 s[6:7], v{VT+1}, v{VT+1}
    s_or_b64 vcc, vcc, s[6:7]
    s_cbranch_vccz {L('fin')}
    """)
    M, LS, AL = VCUR, VNXT, VT + 2
    a(f"""
    v_sub_f32 v{M}, 0, v{NEG[0]}
    v_mov_b32 v{LS}, 0
    s_lshl_b32 s{S_G}, s{S_HD}, 18
    s_mov_b32 s{S_CNT}, 0
    """)
    for i in range(16): a(f"v_mov_b32 v{OO+i}, 0")
    a.label(L("slow"))
    a(f"""
    buffer_load_dwordx4 {vr(KF, 4)}, v{VL16}, s[44:47], s{S_G} offen
    buffer_load_dwordx4 {vr(KF + 4, 4)}, v{VL16}, s[44:47], s{S_G} offen offset:1024
    buffer_load_dwordx4 {vr(VF, 4)}, v{VL16}, s[44:47], s{S_G} offen offset:2048
    buffer_load_dwordx4 {vr(VF + 4, 4)}, v{VL16}, s[44:47], s{S_G} offen offset:3072
    s_waitcnt vmcnt(0)
    v_mfma_f32_32x32x16_bf16 {vr(SB, 16)}, {vr(KF, 4)}, {vr(QQ, 4)}, 0
    v_mfma_f32_32x32x16_bf16 {vr(SB, 16)}, {vr(KF + 4, 4)}, {vr(QQ + 4, 4)}, {vr(SB, 16)}
    """)
    rowmax(VT, SB, VT + 1, extra=M)
    a(f"""
    v_sub_f32 v{AL}, v{M}, v{VT}
    v_exp_f32 v{AL}, v{AL}
    v_mov_b32 v{M}, v{VT}
    v_mul_f32 v{LS}, v{LS}, v{AL}
    """)
    for i in range(16): a(f"v_sub_f32 v{TMP+i}, v{SB+i}, v{M}")
    for i in range(16): a(f"v_exp_f32 v{TMP+i}, v{TMP+i}")
    for i in range(16): a(f"v_mul_f32 v{OO+i}, v{OO+i}, v{AL}")
    for i in range(8): a(f"v_cvt_pk_bf16_f32 v{PP + i}, v{TMP + 2 * i}, v{TMP + 2 * i + 1}")
    for i in range(8):
        a(f"v_lshlrev_b32 v{VT}, 16, v{PP+i}\nv_and_b32 v{VT+1}, 0xffff0000, v{PP+i}")
        a(f"v_add_f32 v{LS}, v{LS}, v{VT}\nv_add_f32 v{LS}, v{LS}, v{VT+1}")
    PV(0, 0); PV(0, 1)
    a(f"""
    s_add_u32 s{S_G}, s{S_G}, 4096
    s_add_u32 s{S_CNT}, s{S_CNT}, 1
    s_cmp_lt_u32 s{S_CNT}, 64
    s_cbranch_scc1 {L('slow')}
    v_mov_b32 v{VT}, v{LS}
    v_permlane32_swap_b32 v{LS}, v{VT}
    v_add_f32 v{LACC}, v{LS}, v{VT}
    """)
    a.label(L("fin"))
    src, size = bufsrc("o"); srd(a, 48, src, size)
    a(f"""
    v_rcp_f32 v{VT}, v{LACC}
    s_lshl_b32 s4, s{S_QT}, 16
    s_lshl_b32 s7, s{S_HD}, 11
    s_add_u32 s4, s4, s7
    """)
    for i in range(16): a(f"v_mul_f32 v{TMP+i}, v{OO+i}, v{VT}")
    for i in range(8): a(f"v_cvt_pk_bf16_f32 v{PP + i}, v{TMP + 2 * i}, v{TMP + 2 * i + 1}")
    a(f"""
    buffer_store_dwordx4 {vr(PP, 4)}, v{VL16}, s[48:51], s4 offen{ST}
    buffer_store_dwordx4 {vr(PP + 4, 4)}, v{VL16}, s[48:51], s4 offen offset:1024{ST}
    """)
    stamp(a, 5)
    stamp_flush(a, 6, S_W, L("end"))
    a.label(L("end"))
    a("s_endpgm")
    return k

def main():
    out = sys.argv[1]
    specs = [
        lambda: gemm("qkv1_kernel", "qkv", "x", raw=True),
        lambda: attn("attn_kernel", retile=True),
        lambda: gemm("wo1_kernel", "wo", "o", res_buf="x", out_buf="x1"),
        lambda: gemm("w1a_kernel", "w1", "x1"),
        lambda: gemm("w2a_kernel", "w2", "h", res_buf="x1", out_buf="x2"),
        lambda: gemm("qkv2_kernel", "qkv", "x2", csmode="load"),
        lambda: attn("attn2_kernel"),
        lambda: gemm("wo2_kernel", "wo", "o", res_buf="x2", out_buf="x3"),
        lambda: gemm("w1b_kernel", "w1", "x3", csmode="load"),
        lambda: gemm("w2b_kernel", "w2", "h", res_buf="x3", out_buf="out"),
    ]
    ks = []
    for i, sp in enumerate(specs):
        KIDX[0] = i
        ks.append(sp())
    byname = {k.name: k for k in ks}
    order = [k.name for k in ks]
    hdr = open("interleave_layers__mha_block__mixer_channel_mlp__prompt.s.ref").read().split("; Override")[0]
    txt = hdr
    for n in order:
        k = byname[n]
        txt += f"; @launch kernel={k.name} grid=({k.grid},1,1) block=({k.block},1,1) lds={k.lds}\n"
    txt += '.amdgcn_target "amdgcn-amd-amdhsa--gfx950"\n.text\n'
    kds = ""
    for k in ks:
        b, kd = k.finish()
        txt += b; kds += kd
    txt += '.section .rodata,"a"\n' + kds
    sm = os.environ.get("STMOD")
    if sm:
        import re
        txt = re.sub(r"(buffer_store_dwordx[24] v\[\d+:\d+\], v\d+, s\[(?:40:43|48:51)\][^\n]*)", lambda m: m.group(1) + " " + sm, txt)
    open(out, "w").write(txt)

if __name__ == "__main__":
    main()
```

```python
import sys, math, struct
sys.path.insert(0, "gen")
from asmlib import Asm

S, D, H, DH, F = 2048, 1024, 32, 32, 3584
MB = 1 << 20
WS_Q, WS_KV, WS_O, WS_H = 0, 4 * MB, 12 * MB, 16 * MB
WS_X1, WS_X2, WS_X3 = 32 * MB, 36 * MB, 40 * MB
WS_CSQ, WS_CS1 = 44 * MB, 44 * MB + 65536
WS_STAT, WS_FLAGS = 45 * MB, 46 * MB
WS_XBUF = 76 * MB
WS_WT = 52 * MB
WT_OFF = dict(wqkv=0, wo=6 * MB, w1=8 * MB, w2=16 * MB)
ST = ' sc1'
KA = dict(x=0, wqkv=8, wo=16, w1=32, b1=40, w2=48, b2=56, out=64, dbg=72, ws=80)
EPS = 1e-5
QSCALE = (DH ** -0.5) * math.log2(math.e)

def f32(x):
    return "0x%08x" % struct.unpack("<I", struct.pack("<f", x))[0]

def vr(b, n):
    return f"v[{b}:{b+n-1}]" if n > 1 else f"v{b}"

class Kernel:
    def __init__(self, name, grid, block, lds):
        self.name, self.grid, self.block, self.lds = name, grid, block, lds
        self.a = Asm()
    def finish(self):
        self.a.pad()
        nv = self.a.max_vgpr() + 1
        nv = (nv + 7) // 8 * 8
        ns = self.a.max_sgpr() + 1
        body = f".globl {self.name}\n.p2align 8\n.type {self.name},@function\n{self.name}:\n" + self.a.text()
        kd = f""".p2align 6
.amdhsa_kernel {self.name}
  .amdhsa_next_free_vgpr {nv}
  .amdhsa_next_free_sgpr {max(ns, 16)}
  .amdhsa_accum_offset {nv}
  .amdhsa_group_segment_fixed_size 0
  .amdhsa_kernarg_size 88
  .amdhsa_user_sgpr_count 2
  .amdhsa_user_sgpr_kernarg_segment_ptr 1
  .amdhsa_system_sgpr_workgroup_id_x 1
.end_amdhsa_kernel
"""
        return body, kd

import os
DIAG = bool(os.environ.get("DIAG"))
KIDX = [0]
def stamp(a, i):
    if not DIAG: return
    a(f"s_memtime s[{64+2*i}:{65+2*i}]")
def stamp_real(a, i):
    if not DIAG: return
    a(f"s_memrealtime s[{64+2*i}:{65+2*i}]")
def stamp_flush(a, n, wreg, label):
    if not DIAG: return
    a(f"""
    s_waitcnt vmcnt(0) lgkmcnt(0)
    s_memtime s[{64+2*n}:{65+2*n}]
    s_memrealtime s[{66+2*n}:{67+2*n}]
    s_waitcnt lgkmcnt(0)
    s_cmp_lg_u32 s{wreg}, 0
    s_cbranch_scc1 {label}
    s_add_u32 s88, s36, {48 * MB + KIDX[0] * 8192}
    s_addc_u32 s89, s37, 0
    s_mov_b32 s90, 8192
    s_mov_b32 s91, 0x20000
    s_lshl_b32 s60, s2, 4
    v_mov_b32 v1, s60
    v_mov_b32 v4, s66
    v_mov_b32 v5, s{66+2*n}
    s_getreg_b32 s61, hwreg(HW_REG_XCC_ID)
    v_mov_b32 v6, s61
    s_sub_u32 s61, s{64+2*n}, s64
    v_mov_b32 v7, s61
    buffer_store_dwordx4 v[4:7], v1, s[88:91], 0 offen
    s_cmp_ge_u32 s2, 4
    s_cbranch_scc1 {label}
    s_mov_b32 s88, s34
    s_mov_b32 s89, s35
    s_mov_b32 s90, 256
    s_mov_b32 s91, 0x20000
    s_lshl_b32 s60, s2, 5
    v_mov_b32 v1, s60
    """)
    for i in range(2, n + 1):
        a(f"s_sub_u32 s61, s{64+2*i}, s64\nv_mov_b32 v2, s61\nbuffer_store_dword v2, v1, s[88:91], 0 offen offset:{4*(i-2)}")
    a(f"s_sub_u32 s61, s{66+2*n}, s66\nv_mov_b32 v2, s61\nbuffer_store_dword v2, v1, s[88:91], 0 offen offset:{4*(n-1)}")

def srd(a, d, src, size):
    if src[0] == "ka":
        a(f"s_mov_b32 s{d}, s{src[1]}\ns_mov_b32 s{d+1}, s{src[1]+1}")
    else:
        a(f"s_add_u32 s{d}, s{src[1]}, {src[2]}\ns_addc_u32 s{d+1}, s{src[1]+1}, 0")
    a(f"s_mov_b32 s{d+2}, {size}\ns_mov_b32 s{d+3}, 0x20000")

P = dict(x=16, wqkv=18, wo=20, w1=24, b1=26, w2=28, b2=30, out=32, dbg=34, ws=36)
def load_kernargs(a):
    a("""s_load_dwordx16 s[16:31], s[0:1], 0
         s_load_dwordx4 s[32:35], s[0:1], 64
         s_load_dwordx2 s[36:37], s[0:1], 80""")

LAYER = [0]
STATSEL = [0]
def bufsrc(name):
    src, size = _bufsrc(name)
    if name in ("q", "kv", "qkv", "o", "h", "xbuf", "flags"):
        src = (src[0], src[1], src[2] + LAYER[0] * 96 * MB)
    if name == "stat":
        src = (src[0], src[1], src[2] + STATSEL[0] * 262144)
    return src, size
def _bufsrc(name):
    tbl = {
        "x": (("ka", P["x"]), S * D * 2), "out": (("ka", P["out"]), S * D * 2),
        "x1": (("ws", P["ws"], WS_X1), S * D * 2), "x2": (("ws", P["ws"], WS_X2), S * D * 2),
        "x3": (("ws", P["ws"], WS_X3), S * D * 2),
        "o": (("ws", P["ws"], WS_O), S * D * 2), "h": (("ws", P["ws"], WS_H), S * F * 2),
        "q": (("ws", P["ws"], WS_Q), S * D * 2), "kv": (("ws", P["ws"], WS_KV), 2 * S * D * 2),
        "qkv": (("ws", P["ws"], WS_Q), 3 * S * D * 2),
        "wqkv": (("ka", P["wqkv"]), D * 3 * D * 2), "wo": (("ka", P["wo"]), D * D * 2),
        "w1": (("ka", P["w1"]), D * F * 2), "w2": (("ka", P["w2"]), F * D * 2),
        "b1": (("ka", P["b1"]), F * 2), "b2": (("ka", P["b2"]), D * 2),
        "wqkv_t": (("ws", P["ws"], WS_WT + WT_OFF["wqkv"]), D * 3 * D * 2), "wo_t": (("ws", P["ws"], WS_WT + WT_OFF["wo"]), D * D * 2),
        "w1_t": (("ws", P["ws"], WS_WT + WT_OFF["w1"]), D * F * 2), "w2_t": (("ws", P["ws"], WS_WT + WT_OFF["w2"]), F * D * 2),
        "wt": (("ws", P["ws"], WS_WT), 24 * MB),
        "stat": (("ws", P["ws"], WS_STAT), 16 * S * 8), "flags": (("ws", P["ws"], WS_FLAGS), 65536),
        "xbuf": (("ws", P["ws"], WS_XBUF), 8 * MB),
        "cs_qkv": (("ws", P["ws"], WS_CSQ), 3 * D * 4), "cs_w1": (("ws", P["ws"], WS_CS1), F * 4),
    }
    return tbl[name]

def prefetch(a, what, s_wave, nwaves, va=4, vd=5):
    if not what or "nopf" in os.environ.get("XF", ""): return
    a(f"""
    v_lshlrev_b32 v{va}, 7, v0
    s_and_b32 s4, s2, 7
    s_lshr_b32 s5, s2, 3
    s_mul_i32 s5, s5, {nwaves}
    s_add_u32 s5, s5, s{s_wave}
    s_mul_i32 s6, s2, {nwaves}
    s_add_u32 s6, s6, s{s_wave}
    """)
    per_x = 32 * nwaves
    for w in what:
        src, size = bufsrc(w["buf"]); srd(a, 56, src, size)
        if w["mode"] == "all":
            n = -(-size // (8192 * 256 * nwaves))
            a("s_lshl_b32 s7, s6, 13")
            for i in range(n):
                a(f"buffer_load_dword v{vd}, v{va}, s[56:59], s7 offen")
                if i < n - 1: a(f"s_add_u32 s7, s7, {8192 * 256 * nwaves}")
        else:
            chunks = w["bytes"] // 8192
            tot = chunks * w["nj"]
            n = -(-tot // per_x)
            a(f"s_and_b32 s7, s4, {w['mask']}\ns_mul_i32 s7, s7, {w['xstride']}")
            for i in range(n):
                lj = int(math.log2(w["nj"]))
                a(f"""
                s_add_u32 s60, s5, {i * per_x}
                s_min_u32 s60, s60, {tot - 1}
                s_and_b32 s61, s60, {w['nj'] - 1}
                s_lshr_b32 s60, s60, {lj}
                s_mul_i32 s61, s61, {w['jstride']}
                s_lshl_b32 s60, s60, 13
                s_add_u32 s60, s60, s61
                s_add_u32 s60, s60, s7
                buffer_load_dword v{vd}, v{va}, s[56:59], s60 offen
                """)
PF = {
    "raw": [dict(buf="w1", mode="all"), dict(buf="w2", mode="all"), dict(buf="wo", mode="all")],
    "wo_t": [dict(buf="wo_t", mode="slab", mask=1, xstride=MB, nj=1, jstride=0, bytes=MB)],
    "w1_t": [dict(buf="w1_t", mode="slab", mask=3, xstride=4 * 448 * 1024, nj=1, jstride=0, bytes=4 * 448 * 1024)],
    "w2_t": [dict(buf="w2_t", mode="slab", mask=1, xstride=448 * 1024, nj=8, jstride=896 * 1024, bytes=int(os.environ.get("PFW2", "256")) * 1024)],
    "wqkv_t": [dict(buf="wqkv_t", mode="slab", mask=3, xstride=4 * 384 * 1024, nj=1, jstride=0, bytes=4 * 384 * 1024)],
}

def gemm(name, kind, a_buf, res_buf=None, out_buf=None, csmode="calc", raw=False, zero_flags=False, pf=None):
    BK = 64
    cfg = {
        "qkv": dict(K=D, N=3 * D, w="wqkv", nct=6, NS=4, xm=8, xn=4),
        "w1":  dict(K=D, N=F, w="w1", nct=7, NS=3, xm=8, xn=4),
        "wo":  dict(K=D, N=D, w="wo", nct=2, NS=6, xm=4, xn=8),
        "w2":  dict(K=F, N=D, w="w2", nct=4, NS=5, xm=4, xn=8),
    }[kind]
    K, N, nct, NS, xm, xn = (cfg[k] for k in ("K", "N", "nct", "NS", "xm", "xn"))
    XF = os.environ.get("XF", "")
    LN = kind in ("qkv", "w1")
    SPLIT = kind == "w2"
    a_mode = "nat" if raw else "frag"
    INLOOP = LN and raw
    KW = K // 2 if SPLIT else K
    nst = KW // BK
    A_BYTES = 128 * BK * 2
    STAGE = A_BYTES + nct * BK * 64
    lds = STAGE * NS
    assert lds <= 160 * 1024
    k = Kernel(name, 256, 512, lds)
    a = k.a
    L = lambda s: f"L_{name}_{s}"
    HR = int(os.environ.get('HR', '1')) if raw else 0
    last_slot = (nst - 1) % NS
    free_slot = (last_slot + 1) % NS
    STAT = free_slot * STAGE
    SCR = STAT + 1024

    S_MT, S_NT, S_W, S_KH = 8, 9, 10, 3
    stamp(a, 0); stamp_real(a, 1)
    load_kernargs(a)
    a(f"""
    s_cmp_ge_u32 s2, 256
    s_cbranch_scc1 {L('end')}
    v_lshrrev_b32 v1, 6, v0
    v_and_b32 v0, 63, v0
    s_and_b32 s4, s2, 7
    s_lshr_b32 s5, s2, 3
    v_readfirstlane_b32 s{S_W}, v1
    """)
    if SPLIT:
        a(f"""
        s_and_b32 s{S_KH}, s4, 1
        s_lshr_b32 s7, s4, 1
        s_and_b32 s{S_NT}, s5, 7
        s_lshl_b32 s{S_MT}, s7, 2
        s_lshr_b32 s6, s5, 3
        s_add_u32 s{S_MT}, s{S_MT}, s6
        """)
    else:
        a(f"""
        s_and_b32 s6, s4, {16 // xn - 1}
        s_lshr_b32 s7, s4, {int(math.log2(16 // xn))}
        s_mul_i32 s{S_NT}, s6, {xn}
        s_and_b32 s6, s5, {xn - 1}
        s_add_u32 s{S_NT}, s{S_NT}, s6
        s_mul_i32 s{S_MT}, s7, {xm}
        s_lshr_b32 s6, s5, {int(math.log2(xn))}
        s_add_u32 s{S_MT}, s{S_MT}, s6
        """)
    a(f"""
    s_cmp_lt_u32 s{S_W}, 4
    s_cbranch_scc1 {L('compute')}
    """)
    S_A, S_WK, S_SLOT, S_CNT, S_RD = 48, 49, 50, 51, 52
    a(f"s_sub_u32 s{S_W}, s{S_W}, 4")
    VX = 8
    VW = 12
    if a_mode == "nat":
        a(f"""
        s_lshl_b32 s4, s{S_MT}, 7
        s_lshl_b32 s5, s{S_W}, 5
        s_add_u32 s4, s4, s5
        s_mul_i32 s{S_A}, s4, {K * 2}
        v_lshrrev_b32 v2, 3, v0
        v_mul_u32_u24 v2, {K * 2}, v2
        v_and_b32 v3, 7, v0
        v_lshrrev_b32 v4, 4, v0
        v_xor_b32 v3, v3, v4
        v_lshl_add_u32 v{VX}, v3, 4, v2
        v_xor_b32 v3, 4, v3
        v_lshl_add_u32 v{VX+1}, v3, 4, v2
        v_add_u32 v{VX+1}, {8 * K * 2}, v{VX+1}
        v_add_u32 v{VX+2}, {16 * K * 2}, v{VX}
        v_add_u32 v{VX+3}, {16 * K * 2}, v{VX+1}
        """)
        a_step = BK * 2
    else:
        a(f"""
        s_lshl_b32 s4, s{S_MT}, 2
        s_add_u32 s4, s4, s{S_W}
        s_mul_i32 s{S_A}, s4, {K // 16 * 1024}
        v_lshlrev_b32 v{VX}, 4, v0
        """)
        a_step = BK // 16 * 1024
    if raw:
        a(f"""
        s_mul_i32 s{S_WK}, s{S_W}, {16 * N * 2}
        v_lshrrev_b32 v2, 2, v0
        v_mul_u32_u24 v2, {N * 2}, v2
        v_and_b32 v3, 3, v0
        v_lshl_add_u32 v2, v3, 4, v2
        """)
        for p in range(3):
            a(f"""
            s_add_u32 s4, s{S_NT}, {p * HR}
            s_and_b32 s4, s4, 15
            s_lshl_b32 s4, s4, 7
            s_add_u32 s4, s4, {p * 2048}
            v_add_u32 v{VW + 2 * p}, s4, v2
            v_add_u32 v{VW + 2 * p + 1}, 64, v{VW + 2 * p}
            """)
        w_step = BK * N * 2
        a(f"s_lshl_b32 s6, s{S_W}, 10")
    else:
        a(f"""
        s_mul_i32 s{S_WK}, s{S_NT}, {K // 16 * nct * 1024}
        s_mul_i32 s6, s{S_W}, {nct * 1024}
        s_add_u32 s{S_WK}, s{S_WK}, s6
        v_add_u32 v{VW}, 4096, v{VX}
        """)
        w_step = 4 * nct * 1024
    if SPLIT:
        a(f"""
        s_mul_i32 s4, s{S_KH}, {nst * a_step}
        s_add_u32 s{S_A}, s{S_A}, s4
        s_mul_i32 s4, s{S_KH}, {nst * w_step}
        s_add_u32 s{S_WK}, s{S_WK}, s4
        """)
    a(f"""
    s_lshl_b32 s5, s{S_W}, 12
    s_add_u32 s6, s6, {A_BYTES}
    s_mov_b32 s{S_SLOT}, 0
    s_waitcnt lgkmcnt(0)
    """)
    src, size = bufsrc(a_buf); srd(a, 40, src, size)
    src, size = bufsrc(cfg["w"] + ("" if raw else "_t")); srd(a, 44, src, size)
    PW = 4 + nct
    def issue(fill=()):
        fill = list(fill)
        per = -(-len(fill) // PW) if fill else 0
        n = [0]
        def after():
            for x in fill[n[0] * per:(n[0] + 1) * per]: a(x)
            n[0] += 1
        if raw:
            a(f"s_add_u32 s7, s{S_SLOT}, s5")
            for i in range(4):
                a(f"s_add_u32 m0, s7, {i * 1024}\nbuffer_load_dwordx4 v{VX+i}, s[40:43], s{S_A} offen lds")
                after()
            a(f"s_add_u32 s7, s{S_SLOT}, s6")
            for c in range(nct):
                a(f"s_add_u32 m0, s7, {c * BK * 64}\nbuffer_load_dwordx4 v{VW+c}, s[44:47], s{S_WK} offen lds")
                after()
        else:
            a(f"s_add_u32 m0, s{S_SLOT}, s5")
            for i in range(4):
                a(f"buffer_load_dwordx4 v{VX}, s[40:43], s{S_A} offen offset:{i * 1024} lds")
            a(f"s_add_u32 m0, s{S_SLOT}, s6")
            for c in range(nct):
                if c == 4: a("s_add_u32 m0, m0, 4096")
                a(f"buffer_load_dwordx4 v{VX if c < 4 else VW}, s[44:47], s{S_WK} offen offset:{(c % 4) * 1024} lds")
        a(f"""
        s_add_u32 s{S_A}, s{S_A}, {a_step}
        s_add_u32 s{S_WK}, s{S_WK}, {w_step}
        s_add_u32 s{S_SLOT}, s{S_SLOT}, {STAGE}
        s_cmp_eq_u32 s{S_SLOT}, {STAGE * NS}
        s_cselect_b32 s{S_SLOT}, 0, s{S_SLOT}
        """)
    VSUM, VSQ, VD, VRA, VTM = 24, 28, 32, 48, 50
    def stats_reads():
        if not INLOOP: return
        a(f"v_add_u32 v{VRA}, s{S_RD}, v2")
        for i in range(4):
            a(f"ds_read_b128 {vr(VD+4*i, 4)}, v{VRA} offset:{i * 1024}")
        a(f"""
        s_add_u32 s{S_RD}, s{S_RD}, {STAGE}
        s_cmp_eq_u32 s{S_RD}, {STAGE * NS}
        s_cselect_b32 s{S_RD}, 0, s{S_RD}
        """)
    def stats_valu():
        out = []
        if not INLOOP: return out
        for i in range(4):
            out.append(f"s_waitcnt lgkmcnt({3 - i})")
            for j in range(4):
                d = VD + 4 * i + j
                lo, hi = VTM + 2 * (j & 1), VTM + 1 + 2 * (j & 1)
                out += [f"v_lshlrev_b32 v{lo}, 16, v{d}", f"v_and_b32 v{hi}, 0xffff0000, v{d}",
                        f"v_add_f32 v{VSUM+i}, v{VSUM+i}, v{lo}", f"v_fmac_f32 v{VSQ+i}, v{lo}, v{lo}",
                        f"v_add_f32 v{VSUM+i}, v{VSUM+i}, v{hi}", f"v_fmac_f32 v{VSQ+i}, v{hi}, v{hi}"]
        return out
    ahead = min(2, NS - 1)
    for _ in range(ahead): issue()
    if INLOOP:
        for i in range(4):
            a(f"v_mov_b32 v{VSUM+i}, 0\nv_mov_b32 v{VSQ+i}, 0")
        a(f"v_lshlrev_b32 v2, 4, v0\nv_add_u32 v2, s5, v2\ns_mov_b32 s{S_RD}, 0")
    if zero_flags:
        src, size = bufsrc("flags"); srd(a, 56, src, size)
        a(f"""
        s_lshl_b32 s4, s2, 8
        s_lshl_b32 s7, s{S_W}, 6
        s_add_u32 s4, s4, s7
        v_mov_b32 v20, 0
        v_mov_b32 v21, 0
        """)
    s_ = 0
    while ahead < s_ + NS - 1:
        a(f"s_waitcnt vmcnt({(ahead - s_ - 1) * PW})\ns_barrier")
        stats_reads()
        issue(stats_valu()); issue()
        ahead += 2; s_ += 1
    assert ahead == s_ + NS - 1
    nsteady = nst - ahead
    a(f"s_mov_b32 s{S_CNT}, {nsteady}")
    a.label(L("ld_loop"))
    a(f"s_waitcnt vmcnt({(NS - 2) * PW})\ns_barrier")
    stats_reads()
    issue(stats_valu())
    a(f"s_sub_u32 s{S_CNT}, s{S_CNT}, 1\ns_cmp_lg_u32 s{S_CNT}, 0\ns_cbranch_scc1 {L('ld_loop')}")
    extra = 0
    if zero_flags:
        a("buffer_store_dword v20, v21, s[56:59], s4 offen sc1"); extra += 1
    if LN and not INLOOP:
        src, size = bufsrc("stat"); srd(a, 40, src, size)
        a(f"""
        v_and_b32 v3, 31, v0
        v_lshlrev_b32 v3, 3, v3
        v_lshrrev_b32 v4, 5, v0
        v_lshl_add_u32 v3, v4, 17, v3
        s_lshl_b32 s4, s{S_MT}, 10
        s_lshl_b32 s7, s{S_W}, 8
        s_add_u32 s4, s4, s7
        """)
        for g in range(8):
            a(f"buffer_load_dwordx2 {vr(VD + 2 * g, 2)}, v3, s[40:43], s4 offen")
            if g < 7: a("s_add_u32 s4, s4, 16384")
        extra += 8
    for t in range(NS - 1):
        a(f"s_waitcnt vmcnt({(NS - 2 - t) * PW + extra})\ns_barrier")
        stats_reads()
        for x in stats_valu(): a(x)
    if LN:
        def finish(m, var, r1, t, off):
            a(f"""
            v_mul_f32 v{m}, {f32(1.0 / K)}, v{m}
            v_mul_f32 v{var}, {f32(1.0 / K)}, v{var}
            v_fma_f32 v{var}, -v{m}, v{m}, v{var}
            v_max_f32 v{var}, 0, v{var}
            v_add_f32 v{t}, {f32(EPS)}, v{var}
            v_rsq_f32 v{r1}, v{t}
            """)
            if kind == "w1":
                a(f"""
                v_mul_f32 v{t}, v{r1}, v{r1}
                v_mul_f32 v{t}, v{t}, v{var}
                v_add_f32 v{t}, {f32(EPS)}, v{t}
                v_rsq_f32 v{t}, v{t}
                v_mul_f32 v{r1}, v{r1}, v{t}
                """)
            a(f"""
            v_mul_f32 v{m}, v{m}, v{r1}
            v_sub_f32 v{m}, 0, v{m}
            ds_write_b32 v3, v{r1} offset:{off}
            ds_write_b32 v3, v{m} offset:{512 + off}
            """)
        if INLOOP:
            regs = list(range(VSUM, VSUM + 4)) + list(range(VSQ, VSQ + 4))
            for mode in ("quad_perm:[1,0,3,2]", "quad_perm:[2,3,0,1]", "row_half_mirror"):
                for r in regs:
                    a(f"v_add_f32_dpp v{r}, v{r}, v{r} {mode} row_mask:0xf bank_mask:0xf")
            a(f"""
            v_lshrrev_b32 v3, 3, v0
            v_lshlrev_b32 v3, 2, v3
            s_lshl_b32 s4, s{S_W}, 7
            s_add_u32 s4, s4, {STAT}
            v_add_u32 v3, s4, v3
            """)
            for i in range(4):
                finish(VSUM + i, VSQ + i, VD + i, VD + 4 + i, i * 32)
        else:
            a("s_waitcnt vmcnt(0)")
            for st_ in (8, 4, 2):
                for i in range(st_):
                    a(f"v_add_f32 v{VD+i}, v{VD+i}, v{VD+st_+i}")
            for b in (VD, VD + 1):
                a(f"v_mov_b32 v{VD+2}, v{b}\nv_permlane32_swap_b32 v{b}, v{VD+2}\nv_add_f32 v{b}, v{b}, v{VD+2}")
            a(f"""
            v_and_b32 v3, 31, v0
            v_lshlrev_b32 v3, 2, v3
            s_lshl_b32 s4, s{S_W}, 7
            s_add_u32 s4, s4, {STAT}
            v_add_u32 v3, s4, v3
            """)
            finish(VD, VD + 1, VD + 4, VD + 5, 0)
        a("s_waitcnt lgkmcnt(0)\ns_barrier")
    prefetch(a, pf, S_W, 4)
    a(f"s_branch {L('end')}")

    a.label(L("compute"))
    S_TP, S_FP, S_CS = 11, 12, 13
    a(f"s_and_b32 s{S_TP}, s{S_W}, 1\ns_lshr_b32 s{S_FP}, s{S_W}, 1")
    if kind == "qkv":
        nx, nw = 2, 3; tiles = [(f, t) for f in range(3) for t in range(2)]
    elif kind == "w1":
        nx, nw = 2, 4; tiles = [(f, t) for f in range(3) for t in range(2)] + [(3, 0)]
    elif kind == "wo":
        nx, nw = 1, 2; tiles = [(0, 0), (1, 0)]
    else:
        nx, nw = 2, 2; tiles = [(f, t) for f in range(2) for t in range(2)]
    r = 2
    VT = r; r += 6
    VXB = r; r += 8
    VXA = r; r += 8
    VWB = r; r += 2
    VWA = r; r += 2
    VCS = r; r += 4
    VBIAS = r; r += 4
    r = (r + 3) // 4 * 4
    CALC = LN and csmode == "calc"
    if CALC:
        VSEL = r; r += 4
        VCA = r; r += 4 * nw
    FR = []
    for s2_ in range(2):
        FR.append(dict(x=[r + 4 * i for i in range(nx)], w=[r + 4 * nx + 4 * i for i in range(nw)]))
        r += 4 * (nx + nw)
    ACC = {}
    for tl in tiles:
        ACC[tl] = r; r += 16
    VEP = r
    S_T0, S_T1 = 14, 15
    if kind == "wo":
        a(f"s_mov_b32 s{S_T0}, s{S_W}\ns_mov_b32 s{S_T1}, s{S_W}")
    else:
        sel = {"qkv": None, "w1": S_FP, "w2": S_KH}[kind]
        a(f"s_lshl_b32 s{S_T0}, s{S_TP}, 1")
        if sel is not None: a(f"s_add_u32 s{S_T0}, s{S_T0}, s{sel}")
        a(f"s_xor_b32 s{S_T1}, s{S_T0}, 1")
    a(f"""
    v_and_b32 v{VT}, 31, v0
    v_lshrrev_b32 v{VT+1}, 5, v0
    s_lshl_b32 s6, s{S_T0}, 12
    s_lshl_b32 s7, s{S_T1}, 12
    """)
    if a_mode == "nat":
        a(f"""
        v_lshrrev_b32 v{VT+2}, 1, v{VT}
        v_and_b32 v{VT+2}, 7, v{VT+2}
        v_xor_b32 v{VT+2}, v{VT+2}, v{VT+1}
        v_lshlrev_b32 v{VT+2}, 4, v{VT+2}
        v_lshl_add_u32 v{VT+2}, v{VT}, 7, v{VT+2}
        """)
        for ks in range(4):
            a(f"v_xor_b32 v{VT+3}, {ks * 32}, v{VT+2}")
            a(f"v_add_u32 v{VXB+ks}, s6, v{VT+3}\nv_add_u32 v{VXB+4+ks}, s7, v{VT+3}")
        nxa = 8
    else:
        a(f"""
        v_lshlrev_b32 v{VT+2}, 4, v0
        v_add_u32 v{VXB}, s6, v{VT+2}
        v_add_u32 v{VXB+1}, s7, v{VT+2}
        """)
        nxa = nx
    if raw:
        a(f"""
        v_lshlrev_b32 v{VT+2}, 9, v{VT+1}
        v_bfe_u32 v{VT+3}, v0, 2, 2
        v_lshl_add_u32 v{VT+2}, v{VT+3}, 6, v{VT+2}
        v_bfe_u32 v{VT+3}, v0, 4, 1
        v_lshl_add_u32 v{VT+2}, v{VT+3}, 5, v{VT+2}
        v_and_b32 v{VT+3}, 3, v0
        v_lshl_add_u32 v{VT+2}, v{VT+3}, 3, v{VT+2}
        """)
        CTB = BK * 64; KSB = 1024
    else:
        CTB = 1024; KSB = nct * 1024
    nwa = 1; wreg = [0] * nw
    if kind == "qkv":
        a(f"s_mul_i32 s4, s{S_FP}, {CTB}"); wimm = [0, 2 * CTB, 4 * CTB]
    elif kind == "w1":
        a(f"s_mul_i32 s4, s{S_FP}, {3 * CTB}"); wimm = [0, CTB, 2 * CTB, 0]; wreg = [0, 0, 0, 1]; nwa = 2
        a(f"v_add_u32 v{VWB+1}, {A_BYTES + 6 * CTB}, v{VT+2}")
    elif kind == "wo":
        a("s_mov_b32 s4, 0"); wimm = [0, CTB]
    else:
        a(f"s_mul_i32 s4, s{S_FP}, {2 * CTB}"); wimm = [0, CTB]
    a(f"s_add_u32 s4, s4, {A_BYTES}\nv_add_u32 v{VWB}, s4, v{VT+2}")
    for tl in tiles:
        for i in range(16):
            a(f"v_mov_b32 v{ACC[tl]+i}, 0")
    if CALC:
        for i in range(4 * nw):
            a(f"v_mov_b32 v{VCA+i}, 0")
        a(f"""
        v_lshrrev_b32 v{VT+2}, 4, v0
        v_xor_b32 v{VT+2}, v{VT+2}, v0
        v_and_b32 v{VT+2}, 1, v{VT+2}
        v_cmp_eq_u32 vcc, 0, v{VT+2}
        v_mov_b32 v{VT+3}, 0x3f803f80
        v_cndmask_b32 v{VSEL}, 0, v{VT+3}, vcc
        v_mov_b32 v{VSEL+1}, v{VSEL}
        v_mov_b32 v{VSEL+2}, v{VSEL}
        v_mov_b32 v{VSEL+3}, v{VSEL}
        s_mov_b32 s4, s{S_TP}
        s_mov_b32 s5, 0
        s_mov_b64 vcc, s[4:5]
        """)
    a("s_waitcnt lgkmcnt(0)")
    if LN:
        if kind == "qkv":
            for p in range(3):
                a(f"""
                s_add_u32 s4, s{S_NT}, {p * HR}
                s_and_b32 s4, s4, 15
                s_lshl_b32 s4, s4, 1
                s_add_u32 s{60+p}, s4, s{S_FP}
                s_lshl_b32 s4, s{60+p}, 7
                s_add_u32 s{56+p}, s4, {p * 4096}
                """)
        else:
            a(f"s_mul_i32 s4, s{S_NT}, 896\ns_mul_i32 s5, s{S_FP}, 384\ns_add_u32 s56, s4, s5")
            a("s_add_u32 s57, s56, 128\ns_add_u32 s58, s56, 256\ns_add_u32 s59, s4, 768")
        src, size = bufsrc("cs_" + kind); srd(a, 44, src, size)
        if not CALC:
            a(f"v_lshlrev_b32 v{VT+2}, 2, v{VT}")
            for f in range(nw):
                a(f"buffer_load_dword v{VCS+f}, v{VT+2}, s[44:47], s{56+f} offen")
    if kind == "w1":
        src, size = bufsrc("b1"); srd(a, 40, src, size)
        a(f"""
        s_lshr_b32 s5, s56, 1
        s_lshr_b32 s4, s59, 1
        v_lshlrev_b32 v{VT+2}, 1, v{VT}
        buffer_load_ushort v{VBIAS}, v{VT+2}, s[40:43], s5 offen
        buffer_load_ushort v{VBIAS+1}, v{VT+2}, s[40:43], s5 offen offset:64
        buffer_load_ushort v{VBIAS+2}, v{VT+2}, s[40:43], s5 offen offset:128
        buffer_load_ushort v{VBIAS+3}, v{VT+2}, s[40:43], s4 offen
        """)
    elif not LN:
        src, size = bufsrc(res_buf); srd(a, 40, src, size)
        VRES = VEP; VB2 = VEP + 16; VOA = VEP + 32; VFA = VEP + 33
        if SPLIT: a(f"s_lshl_b32 s59, s{S_NT}, 1\ns_add_u32 s59, s59, s{S_FP}")
        else: a(f"s_mov_b32 s59, s{S_NT}")
        a(f"""
        s_lshl_b32 s4, s{S_MT}, 2
        s_add_u32 s58, s4, s{S_T0}
        s_lshl_b32 s4, s58, 16
        s_lshl_b32 s5, s59, 7
        s_add_u32 s56, s4, s5
        s_lshl_b32 s6, s59, 12
        s_add_u32 s57, s4, s6
        v_lshlrev_b32 v{VOA}, 11, v{VT}
        v_lshl_add_u32 v{VOA}, v{VT+1}, 3, v{VOA}
        v_lshlrev_b32 v{VFA}, 4, v0
        """)
        for f in range(2):
            if res_buf == "x":
                for i in range(4):
                    a(f"buffer_load_dwordx2 {vr(VRES + 8 * f + 2 * i, 2)}, v{VOA}, s[40:43], s56 offen offset:{64 * f + 16 * i}")
            else:
                for j in range(2):
                    a(f"buffer_load_dwordx4 {vr(VRES + 8 * f + 4 * j, 4)}, v{VFA}, s[40:43], s57 offen offset:{2048 * f + 1024 * j}")
        if kind == "w2":
            src, size = bufsrc("b2"); srd(a, 44, src, size)
            a(f"v_lshlrev_b32 v{VT+2}, 3, v{VT+1}")
            for i in range(8):
                a(f"buffer_load_dwordx2 {vr(VB2 + 2 * i, 2)}, v{VT+2}, s[44:47], s5 offen offset:{16 * i}")

    def addr_update():
        for i in range(nxa):
            a(f"v_add_u32 v{VXA+i}, s{S_CS}, v{VXB+i}")
        for i in range(nwa):
            a(f"v_add_u32 v{VWA+i}, s{S_CS}, v{VWB+i}")
        a(f"""
        s_add_u32 s{S_CS}, s{S_CS}, {STAGE}
        s_cmp_eq_u32 s{S_CS}, {STAGE * NS}
        s_cselect_b32 s{S_CS}, 0, s{S_CS}
        """)
    def reads(ks, st):
        out = []
        fr = FR[st]
        def xr(t):
            if a_mode == "nat":
                return f"ds_read_b128 {vr(fr['x'][t], 4)}, v{VXA + 4 * t + ks}"
            return f"ds_read_b128 {vr(fr['x'][t], 4)}, v{VXA + t} offset:{ks * 1024}"
        def wr(f):
            o = wimm[f] + ks * KSB
            if not raw:
                return [f"ds_read_b128 {vr(fr['w'][f], 4)}, v{VWA + wreg[f]} offset:{o}"]
            return [f"ds_read_b64_tr_b16 {vr(fr['w'][f], 2)}, v{VWA + wreg[f]} offset:{o}",
                    f"ds_read_b64_tr_b16 {vr(fr['w'][f] + 2, 2)}, v{VWA + wreg[f]} offset:{o + 256}"]
        out.append(xr(0)); out += wr(0)
        if nx > 1: out.append(xr(1))
        for f in range(1, nw): out += wr(f)
        return out
    def mfmas(st):
        out = []
        fr = FR[st]
        for (f, t) in tiles:
            acc = vr(ACC[(f, t)], 16)
            w_, x_ = vr(fr['w'][f], 4), vr(fr['x'][t], 4)
            if kind == "qkv" and f == 2:
                out.append(f"v_mfma_f32_32x32x16_bf16 {acc}, {x_}, {w_}, {acc}")
            else:
                out.append(f"v_mfma_f32_32x32x16_bf16 {acc}, {w_}, {x_}, {acc}")
        return out
    cnt = [0]
    fifo = []
    def emit_read(x):
        a(x)
        d = x.split()[1].rstrip(",")
        fifo.append(int(d[2:].split(":")[0]))
    def need_regs(regs):
        last = -1
        for i_, d in enumerate(fifo):
            if d in regs: last = i_
        if last >= 0:
            a(f"s_waitcnt lgkmcnt({min(15, len(fifo) - 1 - last)})")
            del fifo[:last + 1]
    def drain():
        if fifo:
            a("s_waitcnt lgkmcnt(0)"); del fifo[:]
    RPG = int(os.environ.get("RPG", "4" if raw else "2"))
    def step(st, rd):
        fr = FR[st]
        m = mfmas(st); fill = list(rd)
        for i, mm in enumerate(m):
            f, t = tiles[i]
            need_regs({fr['w'][f], fr['w'][f] + 2, fr['x'][t]})
            a(mm)
            for x in fill[i * RPG:(i + 1) * RPG]: emit_read(x)
        if CALC:
            cnt[0] += 1
            lab = L(f"cs{cnt[0]}")
            a(f"s_cbranch_vcc{'nz' if st == 0 else 'z'} {lab}")
            for f in range(nw):
                a(f"v_mfma_f32_16x16x32_bf16 {vr(VCA + 4 * f, 4)}, {vr(fr['w'][f], 4)}, {vr(VSEL, 4)}, {vr(VCA + 4 * f, 4)}")
            a.label(lab)
    a(f"s_mov_b32 s{S_CS}, 0\ns_mov_b32 s{S_CNT}, {nst - 1}")
    addr_update()
    stamp(a, 2)
    a("s_barrier")
    stamp(a, 3)
    if DIAG: a("s_waitcnt lgkmcnt(0)")
    for x in reads(0, 0): emit_read(x)
    def stage(last):
        for ks in range(3):
            step(ks & 1, reads(ks + 1, (ks + 1) & 1))
        if not last:
            drain()
            addr_update()
            a("s_barrier")
            step(1, reads(0, 0))
        else:
            step(1, [])
    a.label(L("c_loop"))
    stage(False)
    a(f"s_sub_u32 s{S_CNT}, s{S_CNT}, 1\ns_cmp_lg_u32 s{S_CNT}, 0\ns_cbranch_scc1 {L('c_loop')}")
    stage(True)
    stamp(a, 4)

    T0, T1 = VT, VT + 1
    p2 = lambda r_: vr(r_, 2)
    if LN:
        a(f"""
        s_lshl_b32 s4, s{S_W}, 11
        s_add_u32 s4, s4, {SCR}
        v_lshlrev_b32 v{VT+2}, 2, v{T0}
        v_add_u32 v{VT+2}, s4, v{VT+2}
        v_lshlrev_b32 v{VT+3}, 4, v{T1}
        v_add_u32 v{VT+3}, s4, v{VT+3}
        """)
        if CALC:
            a(f"""
            v_and_b32 v{VT+4}, 1, v0
            v_lshlrev_b32 v{VT+4}, 6, v{VT+4}
            v_lshrrev_b32 v{VT+5}, 4, v0
            v_lshl_add_u32 v{VT+4}, v{VT+5}, 4, v{VT+4}
            v_add_u32 v{VT+4}, s4, v{VT+4}
            """)
            for f in range(nw):
                a(f"ds_write_b128 v{VT+4}, {vr(VCA + 4 * f, 4)} offset:{1024 + f * 128}")
        a("s_waitcnt vmcnt(0)")
        if kind == "w1":
            for f in range(nw):
                a(f"v_lshlrev_b32 v{VBIAS+f}, 16, v{VBIAS+f}")
                a(f"ds_write_b32 v{VT+2}, v{VBIAS+f} offset:{512 + f * 128}")
        if not CALC:
            for f in range(nw):
                a(f"ds_write_b32 v{VT+2}, v{VCS+f} offset:{f * 128}")
        a("s_waitcnt lgkmcnt(0)\ns_barrier")
        if DIAG and "ept" in XF: stamp(a, 2)
        if CALC:
            a(f"""
            s_xor_b32 s5, s{S_W}, 1
            s_lshl_b32 s5, s5, 11
            s_add_u32 s5, s5, {SCR}
            v_lshlrev_b32 v{VT+5}, 2, v{T0}
            v_add_u32 v{VT+4}, s5, v{VT+5}
            """)
            for f in range(nw):
                a(f"ds_read_b32 v{VCS+f}, v{VT+2} offset:{1024 + f * 128}")
                a(f"ds_read_b32 v{VCA+f}, v{VT+4} offset:{1024 + f * 128}")
            a("s_waitcnt lgkmcnt(0)")
            for f in range(nw):
                a(f"v_add_f32 v{VCS+f}, v{VCS+f}, v{VCA+f}")
            a(f"""
            s_or_b32 s5, s{S_MT}, s{S_TP}
            s_cmp_lg_u32 s5, 0
            s_cbranch_scc1 {L('nocs')}
            """)
            for f in range(nw):
                a(f"buffer_store_dword v{VCS+f}, v{VT+5}, s[44:47], s{56+f} offen")
            a.label(L("nocs"))
            for f in range(nw):
                a(f"ds_write_b32 v{VT+2}, v{VCS+f} offset:{f * 128}")
            a("s_waitcnt lgkmcnt(0)")
    FREE = FR[0]['x'][0]
    if kind == "qkv":
        src, size = bufsrc("qkv"); srd(a, 40, src, size)
        a(f"""
        s_lshl_b32 s5, s{S_MT}, 2
        s_add_u32 s5, s5, s{S_T0}
        s_lshl_b32 s4, s60, 6
        s_add_u32 s4, s4, s5
        s_lshl_b32 s14, s4, 11
        s_lshl_b32 s4, s61, 6
        s_add_u32 s4, s4, s5
        s_lshl_b32 s15, s4, 12
        s_add_u32 s15, s15, {WS_KV - WS_Q}
        s_lshl_b32 s4, s62, 6
        s_add_u32 s4, s4, s5
        s_lshl_b32 s13, s4, 12
        s_add_u32 s13, s13, {WS_KV - WS_Q}
        v_lshlrev_b32 v{VT+4}, 4, v0
        s_lshl_b32 s5, s{S_TP}, 8
        s_add_u32 s5, s5, {STAT}
        v_lshlrev_b32 v{VT+5}, 2, v{T0}
        v_add_u32 v{VT+5}, s5, v{VT+5}
        v_lshlrev_b32 v{VXB}, 4, v{T1}
        v_add_u32 v{VXB}, s5, v{VXB}
        """)
        CSQ, CSK = VEP, VEP + 16
        AB = VEP + 32
        TMP = VEP + 40
        VA_, VB_ = FREE, FREE + 16
        for i in range(4):
            a(f"ds_read_b128 {vr(CSQ + 4 * i, 4)}, v{VT+3} offset:{i * 32}")
            a(f"ds_read_b128 {vr(CSK + 4 * i, 4)}, v{VT+3} offset:{128 + i * 32}")
        for t in range(2):
            a(f"ds_read_b32 v{AB + 2 * t}, v{VT+5} offset:{t * 128}")
            a(f"ds_read_b32 v{AB + 2 * t + 1}, v{VT+5} offset:{512 + t * 128}")
        a("s_waitcnt lgkmcnt(0)")
        for i in range(4):
            a(f"v_mul_f32 v{AB + 4 + i}, {f32(QSCALE)}, v{AB + i}")
        def store_tile(acc, soff, off):
            for i in range(8):
                a(f"v_cvt_pk_bf16_f32 v{acc + i}, v{TMP + 2 * i}, v{TMP + 2 * i + 1}")
            a(f"buffer_store_dwordx4 {vr(acc, 4)}, v{VT+4}, s[40:43], s{soff} offen offset:{off}{ST}")
            a(f"buffer_store_dwordx4 {vr(acc + 4, 4)}, v{VT+4}, s[40:43], s{soff} offen offset:{off + 1024}{ST}")
        for t in range(2):
            for i in range(4):
                a(f"ds_read_b128 {vr(VA_ + 4 * i, 4)}, v{VXB} offset:{t * 128 + i * 32}")
                a(f"ds_read_b128 {vr(VB_ + 4 * i, 4)}, v{VXB} offset:{512 + t * 128 + i * 32}")
            for f, cs, ab in ((0, CSQ, AB + 4 + 2 * t), (1, CSK, AB + 2 * t)):
                acc = ACC[(f, t)]
                for i in range(0, 16, 2):
                    a(f"v_pk_mul_f32 {p2(TMP + i)}, {p2(cs + i)}, {p2(ab)} op_sel:[0,1]")
                for i in range(0, 16, 2):
                    a(f"v_pk_fma_f32 {p2(TMP + i)}, {p2(acc + i)}, {p2(ab)}, {p2(TMP + i)} op_sel_hi:[1,0,1]")
                if f == 0: store_tile(acc, 14, t * 2048)
                else: store_tile(acc, 15, 0)
            a("s_waitcnt lgkmcnt(0)")
            acc = ACC[(2, t)]
            assert (VCS + 2) % 2 == 0
            for i in range(0, 16, 2):
                a(f"v_pk_mul_f32 {p2(TMP + i)}, {p2(VB_ + i)}, {p2(VCS + 2)} op_sel_hi:[1,0]")
            for i in range(0, 16, 2):
                a(f"v_pk_fma_f32 {p2(TMP + i)}, {p2(acc + i)}, {p2(VA_ + i)}, {p2(TMP + i)}")
            store_tile(acc, 13, 2048)
            if t == 0:
                a("s_add_u32 s15, s15, 4096\ns_add_u32 s13, s13, 4096")
    elif kind == "w1":
        src, size = bufsrc("h"); srd(a, 40, src, size)
        a(f"""
        s_lshl_b32 s4, s{S_T0}, 7
        s_add_u32 s4, s4, {STAT}
        s_lshl_b32 s5, s{S_T1}, 7
        s_add_u32 s5, s5, {STAT}
        v_lshlrev_b32 v{VT+5}, 2, v{T0}
        v_add_u32 v{VXB}, s4, v{VT+5}
        v_add_u32 v{VXB+1}, s5, v{VT+5}
        s_lshl_b32 s4, s{S_MT}, 2
        s_add_u32 s6, s4, s{S_T0}
        s_add_u32 s7, s4, s{S_T1}
        s_mul_i32 s6, s6, {F // 16 * 1024}
        s_mul_i32 s7, s7, {F // 16 * 1024}
        s_mul_i32 s4, s{S_NT}, {14 * 1024}
        s_add_u32 s6, s6, s4
        s_add_u32 s7, s7, s4
        s_add_u32 s13, s6, {12 * 1024}
        s_mul_i32 s4, s{S_FP}, {6 * 1024}
        s_add_u32 s14, s6, s4
        s_add_u32 s15, s7, s4
        v_lshlrev_b32 v{VT+4}, 4, v0
        """)
        AB = VEP; KC0 = VEP + 4; KC1 = VEP + 6; KONE = VEP + 8; T2 = VEP + 12
        CS_, BI_ = FREE, FREE + 16
        for t in range(2):
            a(f"ds_read_b32 v{AB + 2 * t}, v{VXB + t}")
            a(f"ds_read_b32 v{AB + 2 * t + 1}, v{VXB + t} offset:512")
        C0 = -2.0 * math.log2(math.e) * math.sqrt(2.0 / math.pi)
        C1 = C0 * 0.044715
        for i in range(2):
            a(f"v_mov_b32 v{KC0+i}, {f32(C0)}\nv_mov_b32 v{KC1+i}, {f32(C1)}\nv_mov_b32 v{KONE+i}, 1.0")
        for f in range(4):
            for i in range(4):
                a(f"ds_read_b128 {vr(CS_ + 4 * i, 4)}, v{VT+3} offset:{f * 128 + i * 32}")
                a(f"ds_read_b128 {vr(BI_ + 4 * i, 4)}, v{VT+3} offset:{512 + f * 128 + i * 32}")
            a("s_waitcnt lgkmcnt(0)")
            if DIAG and "ept" in XF and f == 1: stamp(a, 3)
            for t in range(2):
                if (f, t) not in ACC: continue
                acc = ACC[(f, t)]; ab = AB + 2 * t
                E = range(0, 16, 2)
                for i in E:
                    a(f"v_pk_fma_f32 {p2(T2 + i)}, {p2(CS_ + i)}, {p2(ab)}, {p2(BI_ + i)} op_sel:[0,1,0]")
                for i in E:
                    a(f"v_pk_fma_f32 {p2(acc + i)}, {p2(acc + i)}, {p2(ab)}, {p2(T2 + i)} op_sel_hi:[1,0,1]")
                for i in E:
                    a(f"v_pk_mul_f32 {p2(T2 + i)}, {p2(acc + i)}, {p2(acc + i)}")
                for i in E:
                    a(f"v_pk_fma_f32 {p2(T2 + i)}, {p2(T2 + i)}, {p2(KC1)}, {p2(KC0)}")
                for i in E:
                    a(f"v_pk_mul_f32 {p2(T2 + i)}, {p2(T2 + i)}, {p2(acc + i)}")
                for i in range(16):
                    a(f"v_exp_f32 v{T2 + i}, v{T2 + i}")
                for i in E:
                    a(f"v_pk_add_f32 {p2(T2 + i)}, {p2(T2 + i)}, {p2(KONE)}")
                for i in range(16):
                    a(f"v_rcp_f32 v{T2 + i}, v{T2 + i}")
                for i in E:
                    a(f"v_pk_mul_f32 {p2(T2 + i)}, {p2(acc + i)}, {p2(T2 + i)}")
                for i in range(8):
                    a(f"v_cvt_pk_bf16_f32 v{acc + i}, v{T2 + 2 * i}, v{T2 + 2 * i + 1}")
                if f < 3:
                    so, off = 14 + t, f * 2048
                    if off + 1024 > 4095:
                        a(f"s_add_u32 s6, s{so}, {off}"); so, off = 6, 0
                else:
                    so, off = 13, 0
                a(f"buffer_store_dwordx4 {vr(acc, 4)}, v{VT+4}, s[40:43], s{so} offen offset:{off}{ST}")
                a(f"buffer_store_dwordx4 {vr(acc + 4, 4)}, v{VT+4}, s[40:43], s{so} offen offset:{off + 1024}{ST}")
    else:
        a("s_waitcnt vmcnt(0)")
        if SPLIT:
            src, size = bufsrc("xbuf"); srd(a, 44, src, size)
            src, size = bufsrc("flags"); srd(a, 52, src, size)
            a(f"""
            s_lshl_b32 s4, s{S_MT}, 3
            s_add_u32 s4, s4, s{S_NT}
            s_lshl_b32 s4, s4, 1
            s_add_u32 s4, s4, s{S_KH}
            s_lshl_b32 s4, s4, 2
            s_add_u32 s4, s4, s{S_W}
            s_xor_b32 s5, s4, 4
            s_lshl_b32 s6, s5, 12
            """)
            XP = FREE
            for f in range(2):
                for i in range(8):
                    a(f"v_cvt_pk_bf16_f32 v{XP + 8 * f + i}, v{ACC[(f, 1)] + 2 * i}, v{ACC[(f, 1)] + 2 * i + 1}")
                for j in range(2):
                    a(f"buffer_store_dwordx4 {vr(XP + 8 * f + 4 * j, 4)}, v{VFA}, s[44:47], s6 offen offset:{2048 * f + 1024 * j} sc1")
            a(f"""
            s_lshl_b32 s5, s5, 6
            v_mov_b32 v{VT+2}, 0
            v_mov_b32 v{VT+3}, 1
            s_lshl_b32 s6, s4, 12
            s_lshl_b32 s4, s4, 6
            """)
        for f in range(2):
            acc = ACC[(f, 0)]
            for i in range(8):
                srcs = [VRES + 8 * f + i] + ([VB2 + 8 * f + i] if kind == "w2" else [])
                for rsrc in srcs:
                    a(f"v_lshlrev_b32 v{VT+4}, 16, v{rsrc}\nv_and_b32 v{VT+5}, 0xffff0000, v{rsrc}")
                    a(f"v_pk_add_f32 {p2(acc + 2 * i)}, {p2(acc + 2 * i)}, {p2(VT + 4)}")
        if SPLIT:
            a(f"""
            s_waitcnt vmcnt(0)
            buffer_store_dword v{VT+3}, v{VT+2}, s[52:55], s5 offen sc1
            s_mov_b32 s60, 0x40000
            """)
            if DIAG: stamp(a, 3)
            a.label(L("poll"))
            a(f"""
            buffer_load_dword v{VT+3}, v{VT+2}, s[52:55], s4 offen sc1
            s_waitcnt vmcnt(0)
            v_readfirstlane_b32 s5, v{VT+3}
            s_cmp_eq_u32 s5, 1
            s_cbranch_scc1 {L('got')}
            s_sub_u32 s60, s60, 1
            s_cmp_lg_u32 s60, 0
            s_cbranch_scc1 {L('poll')}
            """)
            a.label(L("got"))
            if DIAG: stamp(a, 2)
            for q in range(4):
                a(f"buffer_load_dwordx4 {vr(XP + 4 * q, 4)}, v{VFA}, s[44:47], s6 offen offset:{1024 * q} sc1")
            for q in range(4):
                a(f"s_waitcnt vmcnt({3 - q})")
                for i in range(4):
                    rsrc = XP + 4 * q + i; o = ACC[(q >> 1, 0)] + 2 * (4 * (q & 1) + i)
                    a(f"v_lshlrev_b32 v{VT+4}, 16, v{rsrc}\nv_and_b32 v{VT+5}, 0xffff0000, v{rsrc}")
                    a(f"v_pk_add_f32 {p2(o)}, {p2(o)}, {p2(VT + 4)}")
        src, size = bufsrc(out_buf); srd(a, 48, src, size)
        TMP = FREE
        if out_buf == "out":
            a(f"v_lshl_add_u32 v{VOA}, v{VT+1}, 3, v{VOA}")
        for f in range(2):
            acc = ACC[(f, 0)]; pk = TMP + 8 * f
            for i in range(8):
                a(f"v_cvt_pk_bf16_f32 v{pk + i}, v{acc + 2 * i}, v{acc + 2 * i + 1}")
            if out_buf == "out":
                for j in range(2):
                    a(f"v_permlane32_swap_b32 v{pk + 4 * j}, v{pk + 4 * j + 2}")
                    a(f"v_permlane32_swap_b32 v{pk + 4 * j + 1}, v{pk + 4 * j + 3}")
                    a(f"buffer_store_dwordx4 {vr(pk + 4 * j, 4)}, v{VOA}, s[48:51], s56 offen offset:{64 * f + 32 * j}")
            else:
                for j in range(2):
                    a(f"buffer_store_dwordx4 {vr(pk + 4 * j, 4)}, v{VFA}, s[48:51], s57 offen offset:{2048 * f + 1024 * j}{ST}")
        if out_buf != "out":
            SU, SQ = VRES, VRES + 2
            a0, a1 = ACC[(0, 0)], ACC[(1, 0)]
            a(f"v_pk_add_f32 {p2(SU)}, {p2(a0)}, {p2(a1)}")
            a(f"v_pk_mul_f32 {p2(SQ)}, {p2(a0)}, {p2(a0)}")
            a(f"v_pk_fma_f32 {p2(SQ)}, {p2(a1)}, {p2(a1)}, {p2(SQ)}")
            for i in range(2, 16, 2):
                for b in (a0, a1):
                    a(f"v_pk_add_f32 {p2(SU)}, {p2(SU)}, {p2(b + i)}")
                    a(f"v_pk_fma_f32 {p2(SQ)}, {p2(b + i)}, {p2(b + i)}, {p2(SQ)}")
            src, size = bufsrc("stat"); srd(a, 40, src, size)
            a(f"""
            v_add_f32 v{SU}, v{SU}, v{SU+1}
            v_add_f32 v{SU+1}, v{SQ}, v{SQ+1}
            v_mov_b32 v{SQ}, v{SU}
            v_mov_b32 v{SQ+1}, v{SU+1}
            v_permlane32_swap_b32 v{SU}, v{SQ}
            v_permlane32_swap_b32 v{SU+1}, v{SQ+1}
            v_pk_add_f32 {p2(SU)}, {p2(SU)}, {p2(SQ)}
            s_lshl_b32 s4, s59, 14
            s_lshl_b32 s5, s58, 8
            s_add_u32 s4, s4, s5
            v_lshlrev_b32 v{VT+2}, 3, v{T0}
            buffer_store_dwordx2 {p2(SU)}, v{VT+2}, s[40:43], s4 offen{ST}
            """)
    stamp(a, 5)
    stamp_flush(a, 6, S_W, L("end"))
    a.label(L("end"))
    a("s_endpgm")
    return k

def attn(name, retile=False, pf=None):
    CT = 8; NS = 3; CH = CT * 4096; NCH = 64 // CT
    SCR = CH * NS
    LX = SCR + 8 * 4096
    k = Kernel(name, 256, 512, LX + 2048)
    a = k.a
    L = lambda s: f"L_{name}_{s}"
    stamp(a, 0); stamp_real(a, 1)
    load_kernargs(a)
    S_W, S_HD, S_QT, S_G, S_SLOT, S_CNT, S_RD, S_KH = 8, 9, 10, 11, 12, 13, 14, 15
    a(f"""
    s_cmp_ge_u32 s2, 256
    s_cbranch_scc1 {L('end')}
    s_and_b32 s4, s2, 7
    s_lshr_b32 s5, s2, 3
    s_lshr_b32 s6, s5, 3
    s_lshl_b32 s{S_HD}, s4, 2
    s_add_u32 s{S_HD}, s{S_HD}, s6
    s_and_b32 s5, s5, 7
    v_lshrrev_b32 v1, 6, v0
    v_and_b32 v0, 63, v0
    v_readfirstlane_b32 s{S_W}, v1
    s_waitcnt lgkmcnt(0)
    s_lshl_b32 s{S_QT}, s5, 3
    s_and_b32 s4, s{S_W}, 3
    s_lshl_b32 s4, s4, 1
    s_add_u32 s{S_QT}, s{S_QT}, s4
    s_lshr_b32 s{S_KH}, s{S_W}, 2
    """)
    src, size = bufsrc("kv"); srd(a, 44, src, size)
    a(f"s_add_u32 s46, s{S_HD}, 1\ns_lshl_b32 s46, s46, 18")
    VL16, VCUR, VNXT, VT = 2, 3, 4, 5
    Q = [8, 16]; KF = 24; VF = 32; SEL = 40; LA = [44, 48]; PP = 52
    VRA, VRT, VB = 60, 61, 62
    NEG = [64, 80]; SS = [96, 112]; O = [128, 144]; TMP = 160; RT = 176
    a(f"""
    v_lshlrev_b32 v{VL16}, 4, v0
    s_lshl_b32 s{S_G}, s{S_HD}, 18
    s_lshl_b32 s5, s{S_W}, 12
    s_add_u32 s{S_G}, s{S_G}, s5
    s_mov_b32 s{S_SLOT}, s5
    s_add_u32 s6, s5, {CH * NS}
    """)
    def dma(i):
        if "nodma" in os.environ.get("XF", "") and len(a.ins) > 300: return "s_nop 0"
        return f"buffer_load_dwordx4 v{VL16}, s[44:47], s{S_G} offen offset:{1024 * i} lds"
    def dma_adv():
        a(f"""
        s_add_u32 s{S_G}, s{S_G}, {CH}
        s_add_u32 s{S_SLOT}, s{S_SLOT}, {CH}
        s_cmp_eq_u32 s{S_SLOT}, s6
        s_cselect_b32 s{S_SLOT}, s5, s{S_SLOT}
        """)
    a(f"s_mov_b32 m0, s{S_SLOT}")
    for i in range(4): a(dma(i))
    dma_adv()
    src, size = bufsrc("q"); srd(a, 40, src, size)
    a(f"""
    s_lshl_b32 s4, s{S_HD}, 6
    s_add_u32 s4, s4, s{S_QT}
    s_lshl_b32 s4, s4, 11
    buffer_load_dwordx4 {vr(Q[0], 4)}, v{VL16}, s[40:43], s4 offen
    buffer_load_dwordx4 {vr(Q[0] + 4, 4)}, v{VL16}, s[40:43], s4 offen offset:1024
    buffer_load_dwordx4 {vr(Q[1], 4)}, v{VL16}, s[40:43], s4 offen offset:2048
    buffer_load_dwordx4 {vr(Q[1] + 4, 4)}, v{VL16}, s[40:43], s4 offen offset:3072
    s_mov_b32 m0, s{S_SLOT}
    """)
    for i in range(4): a(dma(i))
    dma_adv()
    nyoung = 4
    S_RS, S_RDST, S_RN, S_RV, S_RSTEP = 52, 53, 54, 55, 56
    def rt_decode(r):
        a(f"s_lshl_b32 s4, s2, 3\ns_add_u32 s4, s4, s{S_W}")
        if r == 0:
            a(f"""
            s_lshr_b32 s7, s4, 7
            s_and_b32 s4, s4, 127
            s_mov_b32 s{S_RV}, 1
            s_cmp_lt_u32 s4, 112
            s_cbranch_scc0 {L('r0wo')}
            s_mul_i32 s57, s4, 147
            s_lshr_b32 s57, s57, 10
            s_mul_i32 s58, s57, 7
            s_sub_u32 s58, s4, s58
            """)
            rt_set("w1", F, 7, 64)
            a(f"s_branch {L('r0j')}")
            a.label(L("r0wo"))
            a("s_sub_u32 s4, s4, 112\ns_lshr_b32 s57, s4, 1\ns_and_b32 s58, s4, 1")
            rt_set("wo", D, 2, 64)
            a.label(L("r0j"))
        elif r == 1:
            a(f"""
            s_mov_b32 s{S_RV}, 1
            s_cmp_lt_u32 s4, 1792
            s_cbranch_scc0 {L('r1wo')}
            s_lshr_b32 s7, s4, 5
            s_and_b32 s4, s4, 31
            s_lshr_b32 s57, s4, 2
            s_and_b32 s58, s4, 3
            """)
            rt_set("w2", D, 4, 224)
            a(f"s_branch {L('r1j')}")
            a.label(L("r1wo"))
            a("""
            s_sub_u32 s4, s4, 1792
            s_lshr_b32 s7, s4, 4
            s_and_b32 s4, s4, 15
            s_add_u32 s4, s4, 16
            s_lshr_b32 s57, s4, 1
            s_and_b32 s58, s4, 1
            """)
            rt_set("wo", D, 2, 64)
            a.label(L("r1j"))
        else:
            a(f"""
            s_lshr_b32 s7, s4, 7
            s_and_b32 s4, s4, 127
            s_cmp_lt_u32 s4, 96
            s_cselect_b32 s{S_RV}, 1, 0
            s_min_u32 s4, s4, 95
            s_and_b32 s57, s4, 31
            s_and_b32 s58, s57, 1
            s_lshr_b32 s57, s57, 1
            s_lshr_b32 s59, s4, 5
            s_lshl_b32 s59, s59, 1
            s_add_u32 s58, s58, s59
            """)
            rt_set("wqkv", 3 * D, 6, 64)
    def rt_set(w, N, nct, KG):
        src, size = bufsrc(w); srd(a, 60, src, size)
        a(f"""
        s_mul_i32 s{S_RS}, s7, {64 * N * 2}
        s_lshl_b32 s4, s4, 6
        s_add_u32 s{S_RS}, s{S_RS}, s4
        s_mov_b32 s{S_RN}, {N * 2}
        s_mul_i32 s{S_RDST}, s57, {KG}
        s_lshl_b32 s7, s7, 2
        s_add_u32 s{S_RDST}, s{S_RDST}, s7
        s_mul_i32 s{S_RDST}, s{S_RDST}, {nct}
        s_add_u32 s{S_RDST}, s{S_RDST}, s58
        s_lshl_b32 s{S_RDST}, s{S_RDST}, 10
        s_add_u32 s{S_RDST}, s{S_RDST}, {WT_OFF[w]}
        s_mov_b32 s{S_RSTEP}, {nct * 1024}
        """)
    def rt_issue():
        a(f"""
        v_lshrrev_b32 v{VRA}, 2, v0
        v_mul_lo_u32 v{VRA}, v{VRA}, s{S_RN}
        v_and_b32 v{VB}, 3, v0
        v_lshl_add_u32 v{VRA}, v{VB}, 4, v{VRA}
        s_lshl_b32 s4, s{S_RN}, 4
        s_add_u32 s7, s5, {SCR}
        """)
        for i in range(4):
            a(f"s_add_u32 m0, s7, {i * 1024}\nbuffer_load_dwordx4 v{VRA}, s[60:63], s{S_RS} offen lds")
            if i < 3: a(f"s_add_u32 s{S_RS}, s{S_RS}, s4")
    def rt_finish():
        for i in range(4):
            a(f"ds_read_b64_tr_b16 {vr(RT + 4 * i, 2)}, v{VRT} offset:{i * 1024}")
            a(f"ds_read_b64_tr_b16 {vr(RT + 4 * i + 2, 2)}, v{VRT} offset:{i * 1024 + 512}")
        a("s_waitcnt lgkmcnt(0)")
        for i in range(4):
            a(f"buffer_store_dwordx4 {vr(RT + 4 * i, 4)}, v{VL16}, s[40:43], s{S_RDST} offen{ST}")
            if i < 3: a(f"s_add_u32 s{S_RDST}, s{S_RDST}, s{S_RSTEP}")
    if retile:
        a(f"""
        v_lshrrev_b32 v{VRT}, 5, v0
        v_lshlrev_b32 v{VRT}, 8, v{VRT}
        v_bfe_u32 v{VB}, v0, 2, 2
        v_lshl_add_u32 v{VRT}, v{VB}, 6, v{VRT}
        v_bfe_u32 v{VB}, v0, 4, 1
        v_lshl_add_u32 v{VRT}, v{VB}, 5, v{VRT}
        v_and_b32 v{VB}, 3, v0
        v_lshl_add_u32 v{VRT}, v{VB}, 3, v{VRT}
        s_add_u32 s4, s5, {SCR}
        v_add_u32 v{VRT}, s4, v{VRT}
        """)
    a(f"""
    v_lshrrev_b32 v{VT}, 2, v0
    v_lshrrev_b32 v{VT+1}, 4, v0
    v_xor_b32 v{VT}, v{VT}, v{VT+1}
    v_and_b32 v{VT}, 1, v{VT}
    v_cmp_eq_u32 vcc, 0, v{VT}
    v_mov_b32 v{VT+1}, 0x3f803f80
    v_cndmask_b32 v{SEL}, 0, v{VT+1}, vcc
    v_mov_b32 v{SEL+1}, v{SEL}
    v_mov_b32 v{SEL+2}, v{SEL}
    v_mov_b32 v{SEL+3}, v{SEL}
    s_lshl_b32 s4, s{S_KH}, 14
    v_add_u32 v{VB+1}, s4, v{VL16}
    v_mov_b32 v{VCUR}, v{VB+1}
    v_add_u32 v{VNXT}, {CH}, v{VB+1}
    s_mov_b32 s{S_RD}, {2 * CH}
    s_mov_b32 s{S_CNT}, 0
    """)
    VBASE = VB + 1
    for x in range(2):
        for i in range(4): a(f"v_mov_b32 v{LA[x]+i}, 0")
        for i in range(16): a(f"v_mov_b32 v{O[x]+i}, 0")
    for i in range(4): a(f"v_mov_b32 v{VF+4+i}, 0\nv_mov_b32 v{PP+4+i}, 0")
    stamp(a, 2)
    a(f"s_waitcnt vmcnt({nyoung})\ns_barrier")
    stamp(a, 3)
    if retile:
        src, size = bufsrc("wt"); srd(a, 40, src, 0)
        a(f"s_mov_b32 s{S_RDST}, 0\ns_mov_b32 s{S_RSTEP}, 0")
    fifo = []
    def rd(reg, addr, off):
        a(f"ds_read_b128 {vr(reg, 4)}, v{addr} offset:{off}"); fifo.append(reg)
    def need(*regs):
        last = -1
        for i_, d in enumerate(fifo):
            if d in regs: last = i_
        if last >= 0:
            a(f"s_waitcnt lgkmcnt({len(fifo) - 1 - last})"); del fifo[:last + 1]
    def rdK(addr, t): rd(KF, addr, t * 4096); rd(KF + 4, addr, t * 4096 + 1024)
    def rdV(addr, t, j): rd(VF + 4 * j, addr, t * 4096 + 2048 + 1024 * j)
    def QK(x, j, C=None):
        C = C if C is not None else (vr(NEG[x], 16) if j == 0 else vr(SS[x], 16))
        a(f"v_mfma_f32_32x32x16_bf16 {vr(SS[x], 16)}, {vr(KF + 4 * j, 4)}, {vr(Q[x] + 4 * j, 4)}, {C}")
    def PV(x, j): a(f"v_mfma_f32_32x32x16_bf16 {vr(O[x], 16)}, {vr(VF + 4 * j, 4)}, {vr(PP + 4 * j, 4)}, {vr(O[x], 16)}")
    def LL(x, j): a(f"v_mfma_f32_16x16x32_bf16 {vr(LA[x], 4)}, {vr(SEL, 4)}, {vr(PP + 4 * j, 4)}, {vr(LA[x], 4)}")
    def rowmax(dst, s, tmp, extra=None):
        a(f"v_max3_f32 v{dst}, v{s}, v{s+1}, v{s+2}")
        for i in range(3, 15, 2):
            a(f"v_max3_f32 v{dst}, v{dst}, v{s+i}, v{s+i+1}")
        a(f"v_max_f32 v{dst}, v{dst}, v{s+15}\nv_mov_b32 v{tmp}, v{dst}\nv_permlane32_swap_b32 v{dst}, v{tmp}")
        if extra is None: a(f"v_max_f32 v{dst}, v{dst}, v{tmp}")
        else: a(f"v_max3_f32 v{dst}, v{dst}, v{tmp}, v{extra}")
    rdK(VL16, 0)
    need(KF, KF + 4)
    for x in range(2):
        QK(x, 0, "0"); QK(x, 1)
    rdK(VCUR, 0); rdV(VCUR, 0, 0)
    for x in range(2):
        rowmax(VT, SS[x], VT + 1)
        for i in range(16): a(f"v_sub_f32 v{NEG[x]+i}, 0, v{VT}")
    need(KF, KF + 4)
    QK(0, 0); QK(0, 1)
    a(f"v_exp_f32 v{TMP}, v{SS[0]}\nv_exp_f32 v{TMP+1}, v{SS[0]+1}")
    entry = list(fifo)
    if DIAG and "chunkts" in os.environ.get("XF", ""):
        a("s_memtime s[80:81]\nv_mov_b32 v200, 0")
    if "prio" in os.environ.get("XF", ""):
        a(f"s_cmp_eq_u32 s{S_KH}, 0\ns_cbranch_scc1 {L('np')}\ns_setprio 1")
        a.label(L("np"))
    a.label(L("loop"))
    NT = CT // 2
    S_SD, S_SS = 38, 39
    def rt_reads(par):
        for i in range(2):
            o = (2 * par + i) * 1024
            a(f"ds_read_b64_tr_b16 {vr(RT + 4 * i, 2)}, v{VRT} offset:{o}")
            a(f"ds_read_b64_tr_b16 {vr(RT + 4 * i + 2, 2)}, v{VRT} offset:{o + 512}")
        if par == 0:
            a(f"""
            s_mov_b32 s{S_SD}, s{S_RDST}
            s_mov_b32 s{S_SS}, s{S_RSTEP}
            s_cmp_eq_u32 s{S_CNT}, 0
            s_cselect_b32 s42, 0, {24 * MB}
            """)
    def rt_store(i):
        a(f"buffer_store_dwordx4 {vr(RT + 4 * i, 4)}, v{VL16}, s[40:43], s{S_SD} offen{ST}")
        a(f"s_add_u32 s{S_SD}, s{S_SD}, s{S_SS}")
    def rt_dec():
        a(f"s_cmp_eq_u32 s{S_CNT}, 2\ns_cbranch_scc1 {L('rt1')}\ns_cmp_ge_u32 s{S_CNT}, 4\ns_cbranch_scc1 {L('rt2')}")
        rt_decode(0); a(f"s_branch {L('rtgo')}")
        a.label(L("rt1")); rt_decode(1); a(f"s_branch {L('rtgo')}")
        a.label(L("rt2")); rt_decode(2)
        a(f"s_cmp_eq_u32 s{S_CNT}, 6\ns_cselect_b32 s62, 0, s62")
        a.label(L("rtgo"))
        a(f"""
        v_lshrrev_b32 v{VRA}, 2, v0
        v_mul_lo_u32 v{VRA}, v{VRA}, s{S_RN}
        v_and_b32 v{VB}, 3, v0
        v_lshl_add_u32 v{VRA}, v{VB}, 4, v{VRA}
        s_lshl_b32 s{S_RN}, s{S_RN}, 4
        """)
    def rt_load(i):
        a(f"s_add_u32 m0, s5, {SCR + i * 1024}\nbuffer_load_dwordx4 v{VRA}, s[60:63], s{S_RS} offen lds")
        a(f"s_add_u32 s{S_RS}, s{S_RS}, s{S_RN}")
    def last_dma():
        a(dma(3)); dma_adv()
    def chunk(rt, par=0):
        slots = {}
        if rt:
            slots[(0, 0)] = lambda: rt_reads(par)
            slots[(1, 1)] = lambda: rt_store(0)
            slots[(2, 1)] = lambda: rt_store(1)
            if par == 0: slots[(3, 0)] = rt_dec
            slots[(3, 1)] = lambda: rt_load(2 * par)
            slots[(5, 0)] = lambda: rt_load(2 * par + 1)
        slots[(6, 1)] = lambda: a(dma(1))
        slots[(7, 0)] = lambda: a(dma(2))
        slots[(7, 1)] = last_dma
        def slot(u, p):
            if (u, p) in slots: slots[(u, p)]()
        for t in range(NT):
            for x in range(2):
                y = 1 - x
                u = 2 * t + x
                e = lambda i: a(f"v_exp_f32 v{TMP + i}, v{SS[x] + i}")
                en = lambda i: a(f"v_exp_f32 v{TMP + i}, v{SS[y] + i}")
                c = lambda i: a(f"v_cvt_pk_bf16_f32 v{PP + i}, v{TMP + 2 * i}, v{TMP + 2 * i + 1}")
                naddr, nt_ = (VCUR, t + 1) if t + 1 < NT else (VNXT, 0)
                need(VF + 4)
                PV(y, 1)
                if x == 0: rdV(VCUR, t, 1)
                e(2); e(3); e(4)
                LL(y, 1)
                slot(u, 0)
                e(5); c(0); c(1)
                need(KF, KF + 4)
                QK(y, 0)
                e(6); e(7); e(8); c(2)
                QK(y, 1)
                if x == 0:
                    if t == NT - 1:
                        a(f"s_waitcnt vmcnt({4 if rt else 0})\ns_barrier")
                    rdK(naddr, nt_)
                    if t == NT - 1:
                        a(f"s_mov_b32 m0, s{S_SLOT}\n{dma(0)}")
                c(3); e(9); e(10); e(11)
                need(VF)
                PV(x, 0)
                if x == 1: rdV(naddr, nt_, 0)
                e(12); e(13); e(14); c(4)
                LL(x, 0)
                slot(u, 1)
                e(15); c(5); c(6); c(7); en(0); en(1)
        assert fifo == entry, (fifo, entry)
        if DIAG and "chunkts" in os.environ.get("XF", ""):
            a(f"s_sub_u32 s82, s80, s64\nv_mov_b32 v201, s82\nv_cmp_eq_u32 vcc, s{S_CNT}, v0\nv_cndmask_b32 v200, v200, v201, vcc\ns_memtime s[80:81]")
        a(f"""
        v_mov_b32 v{VCUR}, v{VNXT}
        v_add_u32 v{VNXT}, s{S_RD}, v{VBASE}
        s_add_u32 s{S_RD}, s{S_RD}, {CH}
        s_cmp_eq_u32 s{S_RD}, {CH * NS}
        s_cselect_b32 s{S_RD}, 0, s{S_RD}
        s_add_u32 s{S_CNT}, s{S_CNT}, 1
        """)
    chunk(retile, 0)
    if retile: chunk(True, 1)
    a(f"""
    s_cmp_lt_u32 s{S_CNT}, {NCH}
    s_cbranch_scc1 {L('loop')}
    s_waitcnt vmcnt(0) lgkmcnt(0)
    """)
    PV(1, 1); LL(1, 1)
    if DIAG and "chunkts" in os.environ.get("XF", ""):
        a(f"""
        s_sub_u32 s82, s80, s64
        v_writelane_b32 v200, s82, 8
        s_cmp_lg_u32 s2, 8
        s_cbranch_scc1 {L('nots')}
        s_mov_b32 s88, s34
        s_mov_b32 s89, s35
        s_mov_b32 s90, 256
        s_mov_b32 s91, 0x20000
        s_lshl_b32 s82, s{S_KH}, 6
        s_add_u32 s82, s82, 128
        v_lshlrev_b32 v201, 2, v0
        v_cmp_gt_u32 vcc, 9, v0
        s_and_b32 s83, s{S_W}, 3
        s_cmp_lg_u32 s83, 0
        s_cbranch_scc1 {L('nots')}
        s_and_saveexec_b64 s[84:85], vcc
        buffer_store_dword v200, v201, s[88:91], s82 offen
        s_mov_b64 exec, s[84:85]
        """)
        a.label(L("nots"))
    stamp(a, 4)
    if pf:
        a("s_mov_b32 s62, s5")
        prefetch(a, pf, S_W, 8, va=RT, vd=RT + 1)
        a("s_mov_b32 s5, s62")
    a(f"""
    s_add_u32 s4, s5, {SCR}
    v_add_u32 v{VT}, s4, v{VL16}
    s_xor_b32 s4, s5, {4 * 4096}
    s_add_u32 s4, s4, {SCR}
    v_add_u32 v{VT+1}, s4, v{VL16}
    s_lshl_b32 s4, s{S_W}, 8
    s_add_u32 s4, s4, {LX}
    v_lshl_add_u32 v{VRA}, v0, 2, s4
    v_xor_b32 v{VRT}, 1024, v{VRA}
    s_cmp_eq_u32 s{S_KH}, 0
    s_cbranch_scc0 {L('kh1')}
    """)
    assert LX % 2048 == 0
    for i in range(4): a(f"ds_write_b128 v{VT}, {vr(O[1] + 4 * i, 4)} offset:{i * 1024}")
    a(f"ds_write_b32 v{VRA}, v{LA[1]}\ns_branch {L('khj')}")
    a.label(L("kh1"))
    for i in range(4): a(f"ds_write_b128 v{VT}, {vr(O[0] + 4 * i, 4)} offset:{i * 1024}")
    a(f"ds_write_b32 v{VRA}, v{LA[0]}\ns_waitcnt lgkmcnt(0)")
    for i in range(16): a(f"v_mov_b32 v{O[0]+i}, v{O[1]+i}")
    for i in range(8): a(f"v_mov_b32 v{Q[0]+i}, v{Q[1]+i}")
    a(f"v_mov_b32 v{LA[0]}, v{LA[1]}\nv_mov_b32 v{NEG[0]}, v{NEG[1]}\ns_add_u32 s{S_QT}, s{S_QT}, 1")
    a.label(L("khj"))
    a("s_waitcnt lgkmcnt(0)\ns_barrier")
    for i in range(4): a(f"ds_read_b128 {vr(TMP + 4 * i, 4)}, v{VT+1} offset:{i * 1024}")
    a(f"ds_read_b32 v{VT}, v{VRT}\ns_waitcnt lgkmcnt(0)")
    OO = O[0]; LACC = LA[0]; QQ = Q[0]; SB = SS[1]
    for i in range(16): a(f"v_add_f32 v{OO+i}, v{OO+i}, v{TMP+i}")
    a(f"v_add_f32 v{LACC}, v{LACC}, v{VT}")
    a(f"v_mov_b32 v{VT}, v{LACC}")
    for i in range(0, 16, 2):
        a(f"v_max3_f32 v{VT}, v{VT}, abs(v{OO+i}), abs(v{OO+i+1})")
    a(f"v_mov_b32 v{VT+1}, v{LACC}")
    for i in range(16):
        a(f"v_add_f32 v{VT+1}, v{VT+1}, v{OO+i}")
    a(f"""
    s_mov_b32 s4, {f32(2.0 ** 60)}
    v_cmp_nle_f32 vcc, v{VT}, s4
    v_cmp_u_f32 s[6:7], v{VT+1}, v{VT+1}
    s_or_b64 vcc, vcc, s[6:7]
    s_cbranch_vccz {L('fin')}
    """)
    M, LS, AL = VCUR, VNXT, VT + 2
    a(f"""
    v_sub_f32 v{M}, 0, v{NEG[0]}
    v_mov_b32 v{LS}, 0
    s_lshl_b32 s{S_G}, s{S_HD}, 18
    s_mov_b32 s{S_CNT}, 0
    """)
    for i in range(16): a(f"v_mov_b32 v{OO+i}, 0")
    a.label(L("slow"))
    a(f"""
    buffer_load_dwordx4 {vr(KF, 4)}, v{VL16}, s[44:47], s{S_G} offen
    buffer_load_dwordx4 {vr(KF + 4, 4)}, v{VL16}, s[44:47], s{S_G} offen offset:1024
    buffer_load_dwordx4 {vr(VF, 4)}, v{VL16}, s[44:47], s{S_G} offen offset:2048
    buffer_load_dwordx4 {vr(VF + 4, 4)}, v{VL16}, s[44:47], s{S_G} offen offset:3072
    s_waitcnt vmcnt(0)
    v_mfma_f32_32x32x16_bf16 {vr(SB, 16)}, {vr(KF, 4)}, {vr(QQ, 4)}, 0
    v_mfma_f32_32x32x16_bf16 {vr(SB, 16)}, {vr(KF + 4, 4)}, {vr(QQ + 4, 4)}, {vr(SB, 16)}
    """)
    rowmax(VT, SB, VT + 1, extra=M)
    a(f"""
    v_sub_f32 v{AL}, v{M}, v{VT}
    v_exp_f32 v{AL}, v{AL}
    v_mov_b32 v{M}, v{VT}
    v_mul_f32 v{LS}, v{LS}, v{AL}
    """)
    for i in range(16): a(f"v_sub_f32 v{TMP+i}, v{SB+i}, v{M}")
    for i in range(16): a(f"v_exp_f32 v{TMP+i}, v{TMP+i}")
    for i in range(16): a(f"v_mul_f32 v{OO+i}, v{OO+i}, v{AL}")
    for i in range(8): a(f"v_cvt_pk_bf16_f32 v{PP + i}, v{TMP + 2 * i}, v{TMP + 2 * i + 1}")
    for i in range(8):
        a(f"v_lshlrev_b32 v{VT}, 16, v{PP+i}\nv_and_b32 v{VT+1}, 0xffff0000, v{PP+i}")
        a(f"v_add_f32 v{LS}, v{LS}, v{VT}\nv_add_f32 v{LS}, v{LS}, v{VT+1}")
    PV(0, 0); PV(0, 1)
    a(f"""
    s_add_u32 s{S_G}, s{S_G}, 4096
    s_add_u32 s{S_CNT}, s{S_CNT}, 1
    s_cmp_lt_u32 s{S_CNT}, 64
    s_cbranch_scc1 {L('slow')}
    v_mov_b32 v{VT}, v{LS}
    v_permlane32_swap_b32 v{LS}, v{VT}
    v_add_f32 v{LACC}, v{LS}, v{VT}
    """)
    a.label(L("fin"))
    src, size = bufsrc("o"); srd(a, 48, src, size)
    a(f"""
    v_rcp_f32 v{VT}, v{LACC}
    s_lshl_b32 s4, s{S_QT}, 16
    s_lshl_b32 s7, s{S_HD}, 11
    s_add_u32 s4, s4, s7
    """)
    for i in range(16): a(f"v_mul_f32 v{TMP+i}, v{OO+i}, v{VT}")
    for i in range(8): a(f"v_cvt_pk_bf16_f32 v{PP + i}, v{TMP + 2 * i}, v{TMP + 2 * i + 1}")
    a(f"""
    buffer_store_dwordx4 {vr(PP, 4)}, v{VL16}, s[48:51], s4 offen{ST}
    buffer_store_dwordx4 {vr(PP + 4, 4)}, v{VL16}, s[48:51], s4 offen offset:1024{ST}
    """)
    stamp(a, 5)
    stamp_flush(a, 6, S_W, L("end"))
    a.label(L("end"))
    a("s_endpgm")
    return k

def main():
    out = sys.argv[1]
    specs = [
        lambda: gemm("qkv1_kernel", "qkv", "x", raw=True),
        lambda: attn("attn_kernel", retile=True),
        lambda: gemm("wo1_kernel", "wo", "o", res_buf="x", out_buf="x1"),
        lambda: gemm("w1a_kernel", "w1", "x1", zero_flags=True),
        lambda: gemm("w2a_kernel", "w2", "h", res_buf="x1", out_buf="x2"),
        lambda: gemm("qkv2_kernel", "qkv", "x2", csmode="load"),
        lambda: attn("attn2_kernel"),
        lambda: gemm("wo2_kernel", "wo", "o", res_buf="x2", out_buf="x3"),
        lambda: gemm("w1b_kernel", "w1", "x3", csmode="load", zero_flags=True),
        lambda: gemm("w2b_kernel", "w2", "h", res_buf="x3", out_buf="out"),
    ]
    ks = []
    for i, sp in enumerate(specs):
        KIDX[0] = i
        LAYER[0] = i // 5
        STATSEL[0] = {2: 0, 3: 0, 4: 1, 5: 1, 7: 2, 8: 2}.get(i, 3)
        ks.append(sp())
    byname = {k.name: k for k in ks}
    order = [k.name for k in ks]
    hdr = open("interleave_layers__mha_block__mixer_channel_mlp__prompt.s.ref").read().split("; Override")[0]
    txt = hdr
    for n in order:
        k = byname[n]
        txt += f"; @launch kernel={k.name} grid=({k.grid},1,1) block=({k.block},1,1) lds={k.lds}\n"
    txt += '.amdgcn_target "amdgcn-amd-amdhsa--gfx950"\n.text\n'
    kds = ""
    for k in ks:
        b, kd = k.finish()
        txt += b; kds += kd
    txt += '.section .rodata,"a"\n' + kds
    sm = os.environ.get("STMOD")
    if sm:
        import re
        txt = re.sub(r"(buffer_store_dwordx[24] v\[\d+:\d+\], v\d+, s\[(?:40:43|48:51)\][^\n]*)", lambda m: m.group(1) + " " + sm, txt)
    open(out, "w").write(txt)

if __name__ == "__main__":
    main()
```

```python
import sys, math, struct
sys.path.insert(0, "gen")
from asmlib import Asm

S, D, H, DH, F = 2048, 1024, 32, 32, 3584
MB = 1 << 20
WS_Q, WS_KV, WS_O, WS_H = 0, 4 * MB, 12 * MB, 16 * MB
WS_X1, WS_X2, WS_X3 = 32 * MB, 36 * MB, 40 * MB
WS_CSQ, WS_CS1 = 44 * MB, 44 * MB + 65536
WS_STAT, WS_FLAGS = 45 * MB, 46 * MB
WS_XBUF = 76 * MB
WS_WT = 52 * MB
WT_OFF = dict(wqkv=0, wo=6 * MB, w1=8 * MB, w2=16 * MB)
ST = ' sc1'
KA = dict(x=0, wqkv=8, wo=16, w1=32, b1=40, w2=48, b2=56, out=64, dbg=72, ws=80)
EPS = 1e-5
QSCALE = (DH ** -0.5) * math.log2(math.e)

def f32(x):
    return "0x%08x" % struct.unpack("<I", struct.pack("<f", x))[0]

def vr(b, n):
    return f"v[{b}:{b+n-1}]" if n > 1 else f"v{b}"

class Kernel:
    def __init__(self, name, grid, block, lds):
        self.name, self.grid, self.block, self.lds = name, grid, block, lds
        self.a = Asm()
    def finish(self):
        self.a.pad()
        nv = self.a.max_vgpr() + 1
        nv = (nv + 7) // 8 * 8
        ns = self.a.max_sgpr() + 1
        body = f".globl {self.name}\n.p2align 8\n.type {self.name},@function\n{self.name}:\n" + self.a.text()
        kd = f""".p2align 6
.amdhsa_kernel {self.name}
  .amdhsa_next_free_vgpr {nv}
  .amdhsa_next_free_sgpr {max(ns, 16)}
  .amdhsa_accum_offset {nv}
  .amdhsa_group_segment_fixed_size 0
  .amdhsa_kernarg_size 88
  .amdhsa_user_sgpr_count 2
  .amdhsa_user_sgpr_kernarg_segment_ptr 1
  .amdhsa_system_sgpr_workgroup_id_x 1
.end_amdhsa_kernel
"""
        return body, kd

import os
DIAG = bool(os.environ.get("DIAG"))
KIDX = [0]
def stamp(a, i):
    if not DIAG: return
    a(f"s_memtime s[{64+2*i}:{65+2*i}]")
def stamp_real(a, i):
    if not DIAG: return
    a(f"s_memrealtime s[{64+2*i}:{65+2*i}]")
def stamp_flush(a, n, wreg, label):
    if not DIAG: return
    a(f"""
    s_waitcnt vmcnt(0) lgkmcnt(0)
    s_memtime s[{64+2*n}:{65+2*n}]
    s_memrealtime s[{66+2*n}:{67+2*n}]
    s_waitcnt lgkmcnt(0)
    s_cmp_lg_u32 s{wreg}, 0
    s_cbranch_scc1 {label}
    s_add_u32 s88, s36, {48 * MB + KIDX[0] * 8192}
    s_addc_u32 s89, s37, 0
    s_mov_b32 s90, 8192
    s_mov_b32 s91, 0x20000
    s_lshl_b32 s60, s2, 4
    v_mov_b32 v1, s60
    v_mov_b32 v4, s66
    v_mov_b32 v5, s{66+2*n}
    s_getreg_b32 s61, hwreg(HW_REG_XCC_ID)
    v_mov_b32 v6, s61
    s_sub_u32 s61, s{64+2*n}, s64
    v_mov_b32 v7, s61
    buffer_store_dwordx4 v[4:7], v1, s[88:91], 0 offen
    s_cmp_ge_u32 s2, 4
    s_cbranch_scc1 {label}
    s_mov_b32 s88, s34
    s_mov_b32 s89, s35
    s_mov_b32 s90, 256
    s_mov_b32 s91, 0x20000
    s_lshl_b32 s60, s2, 5
    v_mov_b32 v1, s60
    """)
    for i in range(2, n + 1):
        a(f"s_sub_u32 s61, s{64+2*i}, s64\nv_mov_b32 v2, s61\nbuffer_store_dword v2, v1, s[88:91], 0 offen offset:{4*(i-2)}")
    a(f"s_sub_u32 s61, s{66+2*n}, s66\nv_mov_b32 v2, s61\nbuffer_store_dword v2, v1, s[88:91], 0 offen offset:{4*(n-1)}")

def srd(a, d, src, size):
    if src[0] == "ka":
        a(f"s_mov_b32 s{d}, s{src[1]}\ns_mov_b32 s{d+1}, s{src[1]+1}")
    else:
        a(f"s_add_u32 s{d}, s{src[1]}, {src[2]}\ns_addc_u32 s{d+1}, s{src[1]+1}, 0")
    a(f"s_mov_b32 s{d+2}, {size}\ns_mov_b32 s{d+3}, 0x20000")

P = dict(x=16, wqkv=18, wo=20, w1=24, b1=26, w2=28, b2=30, out=32, dbg=34, ws=36)
def load_kernargs(a):
    a("""s_load_dwordx16 s[16:31], s[0:1], 0
         s_load_dwordx4 s[32:35], s[0:1], 64
         s_load_dwordx2 s[36:37], s[0:1], 80""")

LAYER = [0]
STATSEL = [0]
def bufsrc(name):
    src, size = _bufsrc(name)
    if name in ("q", "kv", "qkv", "o", "h", "xbuf", "flags"):
        src = (src[0], src[1], src[2] + LAYER[0] * 96 * MB)
    if name == "stat":
        src = (src[0], src[1], src[2] + STATSEL[0] * 262144)
    return src, size
def _bufsrc(name):
    tbl = {
        "x": (("ka", P["x"]), S * D * 2), "out": (("ka", P["out"]), S * D * 2),
        "x1": (("ws", P["ws"], WS_X1), S * D * 2), "x2": (("ws", P["ws"], WS_X2), S * D * 2),
        "x3": (("ws", P["ws"], WS_X3), S * D * 2),
        "o": (("ws", P["ws"], WS_O), S * D * 2), "h": (("ws", P["ws"], WS_H), S * F * 2),
        "q": (("ws", P["ws"], WS_Q), S * D * 2), "kv": (("ws", P["ws"], WS_KV), 2 * S * D * 2),
        "qkv": (("ws", P["ws"], WS_Q), 3 * S * D * 2),
        "wqkv": (("ka", P["wqkv"]), D * 3 * D * 2), "wo": (("ka", P["wo"]), D * D * 2),
        "w1": (("ka", P["w1"]), D * F * 2), "w2": (("ka", P["w2"]), F * D * 2),
        "b1": (("ka", P["b1"]), F * 2), "b2": (("ka", P["b2"]), D * 2),
        "wqkv_t": (("ws", P["ws"], WS_WT + WT_OFF["wqkv"]), D * 3 * D * 2), "wo_t": (("ws", P["ws"], WS_WT + WT_OFF["wo"]), D * D * 2),
        "w1_t": (("ws", P["ws"], WS_WT + WT_OFF["w1"]), D * F * 2), "w2_t": (("ws", P["ws"], WS_WT + WT_OFF["w2"]), F * D * 2),
        "wt": (("ws", P["ws"], WS_WT), 24 * MB),
        "stat": (("ws", P["ws"], WS_STAT), 16 * S * 8), "flags": (("ws", P["ws"], WS_FLAGS), 65536),
        "xbuf": (("ws", P["ws"], WS_XBUF), 8 * MB),
        "cs_qkv": (("ws", P["ws"], WS_CSQ), 3 * D * 4), "cs_w1": (("ws", P["ws"], WS_CS1), F * 4),
    }
    return tbl[name]

def prefetch(a, what, s_wave, nwaves, va=4, vd=5):
    if not what or "nopf" in os.environ.get("XF", ""): return
    a(f"""
    v_lshlrev_b32 v{va}, 7, v0
    s_and_b32 s4, s2, 7
    s_lshr_b32 s5, s2, 3
    s_mul_i32 s5, s5, {nwaves}
    s_add_u32 s5, s5, s{s_wave}
    s_mul_i32 s6, s2, {nwaves}
    s_add_u32 s6, s6, s{s_wave}
    """)
    per_x = 32 * nwaves
    for w in what:
        src, size = bufsrc(w["buf"]); srd(a, 56, src, size)
        if w["mode"] == "all":
            n = -(-size // (8192 * 256 * nwaves))
            a("s_lshl_b32 s7, s6, 13")
            for i in range(n):
                a(f"buffer_load_dword v{vd}, v{va}, s[56:59], s7 offen")
                if i < n - 1: a(f"s_add_u32 s7, s7, {8192 * 256 * nwaves}")
        else:
            chunks = w["bytes"] // 8192
            tot = chunks * w["nj"]
            n = -(-tot // per_x)
            a(f"s_and_b32 s7, s4, {w['mask']}\ns_mul_i32 s7, s7, {w['xstride']}")
            for i in range(n):
                lj = int(math.log2(w["nj"]))
                a(f"""
                s_add_u32 s60, s5, {i * per_x}
                s_min_u32 s60, s60, {tot - 1}
                s_and_b32 s61, s60, {w['nj'] - 1}
                s_lshr_b32 s60, s60, {lj}
                s_mul_i32 s61, s61, {w['jstride']}
                s_lshl_b32 s60, s60, 13
                s_add_u32 s60, s60, s61
                s_add_u32 s60, s60, s7
                buffer_load_dword v{vd}, v{va}, s[56:59], s60 offen
                """)
PF = {
    "raw": [dict(buf="w1", mode="all"), dict(buf="w2", mode="all"), dict(buf="wo", mode="all")],
    "wo_t": [dict(buf="wo_t", mode="slab", mask=1, xstride=MB, nj=1, jstride=0, bytes=MB)],
    "w1_t": [dict(buf="w1_t", mode="slab", mask=3, xstride=4 * 448 * 1024, nj=1, jstride=0, bytes=4 * 448 * 1024)],
    "w2_t": [dict(buf="w2_t", mode="slab", mask=1, xstride=448 * 1024, nj=8, jstride=896 * 1024, bytes=int(os.environ.get("PFW2", "256")) * 1024)],
    "wqkv_t": [dict(buf="wqkv_t", mode="slab", mask=3, xstride=4 * 384 * 1024, nj=1, jstride=0, bytes=4 * 384 * 1024)],
}

def gemm(name, kind, a_buf, res_buf=None, out_buf=None, csmode="calc", raw=False, zero_flags=False, pf=None):
    BK = 64
    cfg = {
        "qkv": dict(K=D, N=3 * D, w="wqkv", nct=6, NS=4, xm=8, xn=4),
        "w1":  dict(K=D, N=F, w="w1", nct=7, NS=3, xm=8, xn=4),
        "wo":  dict(K=D, N=D, w="wo", nct=2, NS=6, xm=4, xn=8),
        "w2":  dict(K=F, N=D, w="w2", nct=4, NS=5, xm=4, xn=8),
    }[kind]
    K, N, nct, NS, xm, xn = (cfg[k] for k in ("K", "N", "nct", "NS", "xm", "xn"))
    XF = os.environ.get("XF", "")
    LN = kind in ("qkv", "w1")
    SPLIT = kind == "w2"
    a_mode = "nat" if raw else "frag"
    INLOOP = LN and raw
    KW = K // 2 if SPLIT else K
    nst = KW // BK
    A_BYTES = 128 * BK * 2
    STAGE = A_BYTES + nct * BK * 64
    lds = STAGE * NS
    assert lds <= 160 * 1024
    k = Kernel(name, 256, 512, lds)
    a = k.a
    L = lambda s: f"L_{name}_{s}"
    HR = int(os.environ.get('HR', '1')) if raw else 0
    last_slot = (nst - 1) % NS
    free_slot = (last_slot + 1) % NS
    STAT = free_slot * STAGE
    SCR = STAT + 1024

    S_MT, S_NT, S_W, S_KH = 8, 9, 10, 3
    stamp(a, 0); stamp_real(a, 1)
    load_kernargs(a)
    a(f"""
    s_cmp_ge_u32 s2, 256
    s_cbranch_scc1 {L('end')}
    v_lshrrev_b32 v1, 6, v0
    v_and_b32 v0, 63, v0
    s_and_b32 s4, s2, 7
    s_lshr_b32 s5, s2, 3
    v_readfirstlane_b32 s{S_W}, v1
    """)
    if SPLIT:
        a(f"""
        s_and_b32 s{S_KH}, s4, 1
        s_lshr_b32 s7, s4, 1
        s_and_b32 s{S_NT}, s5, 7
        s_lshl_b32 s{S_MT}, s7, 2
        s_lshr_b32 s6, s5, 3
        s_add_u32 s{S_MT}, s{S_MT}, s6
        """)
    else:
        a(f"""
        s_and_b32 s6, s4, {16 // xn - 1}
        s_lshr_b32 s7, s4, {int(math.log2(16 // xn))}
        s_mul_i32 s{S_NT}, s6, {xn}
        s_and_b32 s6, s5, {xn - 1}
        s_add_u32 s{S_NT}, s{S_NT}, s6
        s_mul_i32 s{S_MT}, s7, {xm}
        s_lshr_b32 s6, s5, {int(math.log2(xn))}
        s_add_u32 s{S_MT}, s{S_MT}, s6
        """)
    a(f"""
    s_cmp_lt_u32 s{S_W}, 4
    s_cbranch_scc1 {L('compute')}
    """)
    S_A, S_WK, S_SLOT, S_CNT, S_RD = 48, 49, 50, 51, 52
    a(f"s_sub_u32 s{S_W}, s{S_W}, 4")
    VX = 8
    VW = 12
    if a_mode == "nat":
        a(f"""
        s_lshl_b32 s4, s{S_MT}, 7
        s_lshl_b32 s5, s{S_W}, 5
        s_add_u32 s4, s4, s5
        s_mul_i32 s{S_A}, s4, {K * 2}
        v_lshrrev_b32 v2, 3, v0
        v_mul_u32_u24 v2, {K * 2}, v2
        v_and_b32 v3, 7, v0
        v_lshrrev_b32 v4, 4, v0
        v_xor_b32 v3, v3, v4
        v_lshl_add_u32 v{VX}, v3, 4, v2
        v_xor_b32 v3, 4, v3
        v_lshl_add_u32 v{VX+1}, v3, 4, v2
        v_add_u32 v{VX+1}, {8 * K * 2}, v{VX+1}
        v_add_u32 v{VX+2}, {16 * K * 2}, v{VX}
        v_add_u32 v{VX+3}, {16 * K * 2}, v{VX+1}
        """)
        a_step = BK * 2
    else:
        a(f"""
        s_lshl_b32 s4, s{S_MT}, 2
        s_add_u32 s4, s4, s{S_W}
        s_mul_i32 s{S_A}, s4, {K // 16 * 1024}
        v_lshlrev_b32 v{VX}, 4, v0
        """)
        a_step = BK // 16 * 1024
    if raw:
        a(f"""
        s_mul_i32 s{S_WK}, s{S_W}, {16 * N * 2}
        v_lshrrev_b32 v2, 2, v0
        v_mul_u32_u24 v2, {N * 2}, v2
        v_and_b32 v3, 3, v0
        v_lshl_add_u32 v2, v3, 4, v2
        """)
        for p in range(3):
            a(f"""
            s_add_u32 s4, s{S_NT}, {p * HR}
            s_and_b32 s4, s4, 15
            s_lshl_b32 s4, s4, 7
            s_add_u32 s4, s4, {p * 2048}
            v_add_u32 v{VW + 2 * p}, s4, v2
            v_add_u32 v{VW + 2 * p + 1}, 64, v{VW + 2 * p}
            """)
        w_step = BK * N * 2
        a(f"s_lshl_b32 s6, s{S_W}, 10")
    else:
        a(f"""
        s_mul_i32 s{S_WK}, s{S_NT}, {K // 16 * nct * 1024}
        s_mul_i32 s6, s{S_W}, {nct * 1024}
        s_add_u32 s{S_WK}, s{S_WK}, s6
        v_add_u32 v{VW}, 4096, v{VX}
        """)
        w_step = 4 * nct * 1024
    if SPLIT:
        a(f"""
        s_mul_i32 s4, s{S_KH}, {nst * a_step}
        s_add_u32 s{S_A}, s{S_A}, s4
        s_mul_i32 s4, s{S_KH}, {nst * w_step}
        s_add_u32 s{S_WK}, s{S_WK}, s4
        """)
    a(f"""
    s_lshl_b32 s5, s{S_W}, 12
    s_add_u32 s6, s6, {A_BYTES}
    s_mov_b32 s{S_SLOT}, 0
    s_waitcnt lgkmcnt(0)
    """)
    src, size = bufsrc(a_buf); srd(a, 40, src, size)
    src, size = bufsrc(cfg["w"] + ("" if raw else "_t")); srd(a, 44, src, size)
    PW = 4 + nct
    def issue(fill=()):
        fill = list(fill)
        per = -(-len(fill) // PW) if fill else 0
        n = [0]
        def after():
            for x in fill[n[0] * per:(n[0] + 1) * per]: a(x)
            n[0] += 1
        if raw:
            a(f"s_add_u32 s7, s{S_SLOT}, s5")
            for i in range(4):
                a(f"s_add_u32 m0, s7, {i * 1024}\nbuffer_load_dwordx4 v{VX+i}, s[40:43], s{S_A} offen lds")
                after()
            a(f"s_add_u32 s7, s{S_SLOT}, s6")
            for c in range(nct):
                a(f"s_add_u32 m0, s7, {c * BK * 64}\nbuffer_load_dwordx4 v{VW+c}, s[44:47], s{S_WK} offen lds")
                after()
        else:
            a(f"s_add_u32 m0, s{S_SLOT}, s5")
            for i in range(4):
                a(f"buffer_load_dwordx4 v{VX}, s[40:43], s{S_A} offen offset:{i * 1024} lds")
            a(f"s_add_u32 m0, s{S_SLOT}, s6")
            for c in range(nct):
                if c == 4: a("s_add_u32 m0, m0, 4096")
                a(f"buffer_load_dwordx4 v{VX if c < 4 else VW}, s[44:47], s{S_WK} offen offset:{(c % 4) * 1024} lds")
        a(f"""
        s_add_u32 s{S_A}, s{S_A}, {a_step}
        s_add_u32 s{S_WK}, s{S_WK}, {w_step}
        s_add_u32 s{S_SLOT}, s{S_SLOT}, {STAGE}
        s_cmp_eq_u32 s{S_SLOT}, {STAGE * NS}
        s_cselect_b32 s{S_SLOT}, 0, s{S_SLOT}
        """)
    VSUM, VSQ, VD, VRA, VTM = 24, 28, 32, 48, 50
    def stats_reads():
        if not INLOOP: return
        a(f"v_add_u32 v{VRA}, s{S_RD}, v2")
        for i in range(4):
            a(f"ds_read_b128 {vr(VD+4*i, 4)}, v{VRA} offset:{i * 1024}")
        a(f"""
        s_add_u32 s{S_RD}, s{S_RD}, {STAGE}
        s_cmp_eq_u32 s{S_RD}, {STAGE * NS}
        s_cselect_b32 s{S_RD}, 0, s{S_RD}
        """)
    def stats_valu():
        out = []
        if not INLOOP: return out
        for i in range(4):
            out.append(f"s_waitcnt lgkmcnt({3 - i})")
            for j in range(4):
                d = VD + 4 * i + j
                lo, hi = VTM + 2 * (j & 1), VTM + 1 + 2 * (j & 1)
                out += [f"v_lshlrev_b32 v{lo}, 16, v{d}", f"v_and_b32 v{hi}, 0xffff0000, v{d}",
                        f"v_add_f32 v{VSUM+i}, v{VSUM+i}, v{lo}", f"v_fmac_f32 v{VSQ+i}, v{lo}, v{lo}",
                        f"v_add_f32 v{VSUM+i}, v{VSUM+i}, v{hi}", f"v_fmac_f32 v{VSQ+i}, v{hi}, v{hi}"]
        return out
    ahead = min(2, NS - 1)
    for _ in range(ahead): issue()
    if INLOOP:
        for i in range(4):
            a(f"v_mov_b32 v{VSUM+i}, 0\nv_mov_b32 v{VSQ+i}, 0")
        a(f"v_lshlrev_b32 v2, 4, v0\nv_add_u32 v2, s5, v2\ns_mov_b32 s{S_RD}, 0")
    if zero_flags:
        src, size = bufsrc("flags"); srd(a, 56, src, size)
        a(f"""
        s_lshl_b32 s4, s2, 8
        s_lshl_b32 s7, s{S_W}, 6
        s_add_u32 s4, s4, s7
        v_mov_b32 v20, 0
        v_mov_b32 v21, 0
        """)
    s_ = 0
    while ahead < s_ + NS - 1:
        a(f"s_waitcnt vmcnt({(ahead - s_ - 1) * PW})\ns_barrier")
        stats_reads()
        issue(stats_valu()); issue()
        ahead += 2; s_ += 1
    assert ahead == s_ + NS - 1
    nsteady = nst - ahead
    a(f"s_mov_b32 s{S_CNT}, {nsteady}")
    a.label(L("ld_loop"))
    a(f"s_waitcnt vmcnt({(NS - 2) * PW})\ns_barrier")
    stats_reads()
    issue(stats_valu())
    a(f"s_sub_u32 s{S_CNT}, s{S_CNT}, 1\ns_cmp_lg_u32 s{S_CNT}, 0\ns_cbranch_scc1 {L('ld_loop')}")
    extra = 0
    if zero_flags:
        a("buffer_store_dword v20, v21, s[56:59], s4 offen sc1"); extra += 1
    if LN and not INLOOP:
        src, size = bufsrc("stat"); srd(a, 40, src, size)
        a(f"""
        v_and_b32 v3, 31, v0
        v_lshlrev_b32 v3, 3, v3
        v_lshrrev_b32 v4, 5, v0
        v_lshl_add_u32 v3, v4, 17, v3
        s_lshl_b32 s4, s{S_MT}, 10
        s_lshl_b32 s7, s{S_W}, 8
        s_add_u32 s4, s4, s7
        """)
        for g in range(8):
            a(f"buffer_load_dwordx2 {vr(VD + 2 * g, 2)}, v3, s[40:43], s4 offen")
            if g < 7: a("s_add_u32 s4, s4, 16384")
        extra += 8
    for t in range(NS - 1):
        a(f"s_waitcnt vmcnt({(NS - 2 - t) * PW + extra})\ns_barrier")
        stats_reads()
        for x in stats_valu(): a(x)
    if LN:
        def finish(m, var, r1, t, off):
            a(f"""
            v_mul_f32 v{m}, {f32(1.0 / K)}, v{m}
            v_mul_f32 v{var}, {f32(1.0 / K)}, v{var}
            v_fma_f32 v{var}, -v{m}, v{m}, v{var}
            v_max_f32 v{var}, 0, v{var}
            v_add_f32 v{t}, {f32(EPS)}, v{var}
            v_rsq_f32 v{r1}, v{t}
            """)
            if kind == "w1":
                a(f"""
                v_mul_f32 v{t}, v{r1}, v{r1}
                v_mul_f32 v{t}, v{t}, v{var}
                v_add_f32 v{t}, {f32(EPS)}, v{t}
                v_rsq_f32 v{t}, v{t}
                v_mul_f32 v{r1}, v{r1}, v{t}
                """)
            a(f"""
            v_mul_f32 v{m}, v{m}, v{r1}
            v_sub_f32 v{m}, 0, v{m}
            ds_write_b32 v3, v{r1} offset:{off}
            ds_write_b32 v3, v{m} offset:{512 + off}
            """)
        if INLOOP:
            regs = list(range(VSUM, VSUM + 4)) + list(range(VSQ, VSQ + 4))
            for mode in ("quad_perm:[1,0,3,2]", "quad_perm:[2,3,0,1]", "row_half_mirror"):
                for r in regs:
                    a(f"v_add_f32_dpp v{r}, v{r}, v{r} {mode} row_mask:0xf bank_mask:0xf")
            a(f"""
            v_lshrrev_b32 v3, 3, v0
            v_lshlrev_b32 v3, 2, v3
            s_lshl_b32 s4, s{S_W}, 7
            s_add_u32 s4, s4, {STAT}
            v_add_u32 v3, s4, v3
            """)
            for i in range(4):
                finish(VSUM + i, VSQ + i, VD + i, VD + 4 + i, i * 32)
        else:
            a("s_waitcnt vmcnt(0)")
            for st_ in (8, 4, 2):
                for i in range(st_):
                    a(f"v_add_f32 v{VD+i}, v{VD+i}, v{VD+st_+i}")
            for b in (VD, VD + 1):
                a(f"v_mov_b32 v{VD+2}, v{b}\nv_permlane32_swap_b32 v{b}, v{VD+2}\nv_add_f32 v{b}, v{b}, v{VD+2}")
            a(f"""
            v_and_b32 v3, 31, v0
            v_lshlrev_b32 v3, 2, v3
            s_lshl_b32 s4, s{S_W}, 7
            s_add_u32 s4, s4, {STAT}
            v_add_u32 v3, s4, v3
            """)
            finish(VD, VD + 1, VD + 4, VD + 5, 0)
        a("s_waitcnt lgkmcnt(0)\ns_barrier")
    prefetch(a, pf, S_W, 4)
    a(f"s_branch {L('end')}")

    a.label(L("compute"))
    S_TP, S_FP, S_CS = 11, 12, 13
    a(f"s_and_b32 s{S_TP}, s{S_W}, 1\ns_lshr_b32 s{S_FP}, s{S_W}, 1")
    if kind == "qkv":
        nx, nw = 2, 3; tiles = [(f, t) for f in range(3) for t in range(2)]
    elif kind == "w1":
        nx, nw = 2, 4; tiles = [(f, t) for f in range(3) for t in range(2)] + [(3, 0)]
    elif kind == "wo":
        nx, nw = 1, 2; tiles = [(0, 0), (1, 0)]
    else:
        nx, nw = 2, 2; tiles = [(f, t) for f in range(2) for t in range(2)]
    r = 2
    VT = r; r += 6
    VXB = r; r += 8
    VXA = r; r += 8
    VWB = r; r += 2
    VWA = r; r += 2
    VCS = r; r += 4
    VBIAS = r; r += 4
    r = (r + 3) // 4 * 4
    CALC = LN and csmode == "calc"
    if CALC:
        VSEL = r; r += 4
        VCA = r; r += 4 * nw
    FR = []
    for s2_ in range(2):
        FR.append(dict(x=[r + 4 * i for i in range(nx)], w=[r + 4 * nx + 4 * i for i in range(nw)]))
        r += 4 * (nx + nw)
    ACC = {}
    for tl in tiles:
        ACC[tl] = r; r += 16
    VEP = r
    S_T0, S_T1 = 14, 15
    if kind == "wo":
        a(f"s_mov_b32 s{S_T0}, s{S_W}\ns_mov_b32 s{S_T1}, s{S_W}")
    else:
        sel = {"qkv": None, "w1": S_FP, "w2": S_KH}[kind]
        a(f"s_lshl_b32 s{S_T0}, s{S_TP}, 1")
        if sel is not None: a(f"s_add_u32 s{S_T0}, s{S_T0}, s{sel}")
        a(f"s_xor_b32 s{S_T1}, s{S_T0}, 1")
    a(f"""
    v_and_b32 v{VT}, 31, v0
    v_lshrrev_b32 v{VT+1}, 5, v0
    s_lshl_b32 s6, s{S_T0}, 12
    s_lshl_b32 s7, s{S_T1}, 12
    """)
    if a_mode == "nat":
        a(f"""
        v_lshrrev_b32 v{VT+2}, 1, v{VT}
        v_and_b32 v{VT+2}, 7, v{VT+2}
        v_xor_b32 v{VT+2}, v{VT+2}, v{VT+1}
        v_lshlrev_b32 v{VT+2}, 4, v{VT+2}
        v_lshl_add_u32 v{VT+2}, v{VT}, 7, v{VT+2}
        """)
        for ks in range(4):
            a(f"v_xor_b32 v{VT+3}, {ks * 32}, v{VT+2}")
            a(f"v_add_u32 v{VXB+ks}, s6, v{VT+3}\nv_add_u32 v{VXB+4+ks}, s7, v{VT+3}")
        nxa = 8
    else:
        a(f"""
        v_lshlrev_b32 v{VT+2}, 4, v0
        v_add_u32 v{VXB}, s6, v{VT+2}
        v_add_u32 v{VXB+1}, s7, v{VT+2}
        """)
        nxa = nx
    if raw:
        a(f"""
        v_lshlrev_b32 v{VT+2}, 9, v{VT+1}
        v_bfe_u32 v{VT+3}, v0, 2, 2
        v_lshl_add_u32 v{VT+2}, v{VT+3}, 6, v{VT+2}
        v_bfe_u32 v{VT+3}, v0, 4, 1
        v_lshl_add_u32 v{VT+2}, v{VT+3}, 5, v{VT+2}
        v_and_b32 v{VT+3}, 3, v0
        v_lshl_add_u32 v{VT+2}, v{VT+3}, 3, v{VT+2}
        """)
        CTB = BK * 64; KSB = 1024
    else:
        CTB = 1024; KSB = nct * 1024
    nwa = 1; wreg = [0] * nw
    if kind == "qkv":
        a(f"s_mul_i32 s4, s{S_FP}, {CTB}"); wimm = [0, 2 * CTB, 4 * CTB]
    elif kind == "w1":
        a(f"s_mul_i32 s4, s{S_FP}, {3 * CTB}"); wimm = [0, CTB, 2 * CTB, 0]; wreg = [0, 0, 0, 1]; nwa = 2
        a(f"v_add_u32 v{VWB+1}, {A_BYTES + 6 * CTB}, v{VT+2}")
    elif kind == "wo":
        a("s_mov_b32 s4, 0"); wimm = [0, CTB]
    else:
        a(f"s_mul_i32 s4, s{S_FP}, {2 * CTB}"); wimm = [0, CTB]
    a(f"s_add_u32 s4, s4, {A_BYTES}\nv_add_u32 v{VWB}, s4, v{VT+2}")
    for tl in tiles:
        for i in range(16):
            a(f"v_mov_b32 v{ACC[tl]+i}, 0")
    if CALC:
        for i in range(4 * nw):
            a(f"v_mov_b32 v{VCA+i}, 0")
        a(f"""
        v_lshrrev_b32 v{VT+2}, 4, v0
        v_xor_b32 v{VT+2}, v{VT+2}, v0
        v_and_b32 v{VT+2}, 1, v{VT+2}
        v_cmp_eq_u32 vcc, 0, v{VT+2}
        v_mov_b32 v{VT+3}, 0x3f803f80
        v_cndmask_b32 v{VSEL}, 0, v{VT+3}, vcc
        v_mov_b32 v{VSEL+1}, v{VSEL}
        v_mov_b32 v{VSEL+2}, v{VSEL}
        v_mov_b32 v{VSEL+3}, v{VSEL}
        s_mov_b32 s4, s{S_TP}
        s_mov_b32 s5, 0
        s_mov_b64 vcc, s[4:5]
        """)
    if raw and "nocpf" not in XF:
        NCH_ = 4
        a(f"""
        s_cmp_ge_u32 s2, {os.environ.get("CPFW", "8")}
        s_cbranch_scc1 {L('nocpf')}
        s_getpc_b64 s[60:61]
        """)
        a.label(L("pc"))
        a(f"""
        s_sub_u32 s60, s60, {L('pc')}-L_text_start
        s_subb_u32 s61, s61, 0
        s_lshl_b32 s4, s{S_W}, 15
        v_lshlrev_b32 v{VT+2}, 7, v0
        v_add_u32 v{VT+2}, s4, v{VT+2}
        """)
        for i in range(NCH_):
            a(f"""
            v_min_u32 v{VT+3}, L_text_end-L_text_start-4, v{VT+2}
            global_load_dword v{VEP + 60}, v{VT+3}, s[60:61]
            v_add_u32 v{VT+2}, 8192, v{VT+2}
            """)
        a.label(L("nocpf"))
    a("s_waitcnt lgkmcnt(0)")
    if LN:
        if kind == "qkv":
            for p in range(3):
                a(f"""
                s_add_u32 s4, s{S_NT}, {p * HR}
                s_and_b32 s4, s4, 15
                s_lshl_b32 s4, s4, 1
                s_add_u32 s{60+p}, s4, s{S_FP}
                s_lshl_b32 s4, s{60+p}, 7
                s_add_u32 s{56+p}, s4, {p * 4096}
                """)
        else:
            a(f"s_mul_i32 s4, s{S_NT}, 896\ns_mul_i32 s5, s{S_FP}, 384\ns_add_u32 s56, s4, s5")
            a("s_add_u32 s57, s56, 128\ns_add_u32 s58, s56, 256\ns_add_u32 s59, s4, 768")
        src, size = bufsrc("cs_" + kind); srd(a, 44, src, size)
        if not CALC:
            a(f"v_lshlrev_b32 v{VT+2}, 2, v{VT}")
            for f in range(nw):
                a(f"buffer_load_dword v{VCS+f}, v{VT+2}, s[44:47], s{56+f} offen")
    if kind == "w1":
        src, size = bufsrc("b1"); srd(a, 40, src, size)
        a(f"""
        s_lshr_b32 s5, s56, 1
        s_lshr_b32 s4, s59, 1
        v_lshlrev_b32 v{VT+2}, 1, v{VT}
        buffer_load_ushort v{VBIAS}, v{VT+2}, s[40:43], s5 offen
        buffer_load_ushort v{VBIAS+1}, v{VT+2}, s[40:43], s5 offen offset:64
        buffer_load_ushort v{VBIAS+2}, v{VT+2}, s[40:43], s5 offen offset:128
        buffer_load_ushort v{VBIAS+3}, v{VT+2}, s[40:43], s4 offen
        """)
    elif not LN:
        src, size = bufsrc(res_buf); srd(a, 40, src, size)
        VRES = VEP; VB2 = VEP + 16; VOA = VEP + 32; VFA = VEP + 33
        if SPLIT: a(f"s_lshl_b32 s59, s{S_NT}, 1\ns_add_u32 s59, s59, s{S_FP}")
        else: a(f"s_mov_b32 s59, s{S_NT}")
        a(f"""
        s_lshl_b32 s4, s{S_MT}, 2
        s_add_u32 s58, s4, s{S_T0}
        s_lshl_b32 s4, s58, 16
        s_lshl_b32 s5, s59, 7
        s_add_u32 s56, s4, s5
        s_lshl_b32 s6, s59, 12
        s_add_u32 s57, s4, s6
        v_lshlrev_b32 v{VOA}, 11, v{VT}
        v_lshl_add_u32 v{VOA}, v{VT+1}, 3, v{VOA}
        v_lshlrev_b32 v{VFA}, 4, v0
        """)
        for f in range(2):
            if res_buf == "x":
                for i in range(4):
                    a(f"buffer_load_dwordx2 {vr(VRES + 8 * f + 2 * i, 2)}, v{VOA}, s[40:43], s56 offen offset:{64 * f + 16 * i}")
            else:
                for j in range(2):
                    a(f"buffer_load_dwordx4 {vr(VRES + 8 * f + 4 * j, 4)}, v{VFA}, s[40:43], s57 offen offset:{2048 * f + 1024 * j}")
        if kind == "w2":
            src, size = bufsrc("b2"); srd(a, 44, src, size)
            a(f"v_lshlrev_b32 v{VT+2}, 3, v{VT+1}")
            for i in range(8):
                a(f"buffer_load_dwordx2 {vr(VB2 + 2 * i, 2)}, v{VT+2}, s[44:47], s5 offen offset:{16 * i}")

    def addr_update():
        for i in range(nxa):
            a(f"v_add_u32 v{VXA+i}, s{S_CS}, v{VXB+i}")
        for i in range(nwa):
            a(f"v_add_u32 v{VWA+i}, s{S_CS}, v{VWB+i}")
        a(f"""
        s_add_u32 s{S_CS}, s{S_CS}, {STAGE}
        s_cmp_eq_u32 s{S_CS}, {STAGE * NS}
        s_cselect_b32 s{S_CS}, 0, s{S_CS}
        """)
    def reads(ks, st):
        out = []
        fr = FR[st]
        def xr(t):
            if a_mode == "nat":
                return f"ds_read_b128 {vr(fr['x'][t], 4)}, v{VXA + 4 * t + ks}"
            return f"ds_read_b128 {vr(fr['x'][t], 4)}, v{VXA + t} offset:{ks * 1024}"
        def wr(f):
            o = wimm[f] + ks * KSB
            if not raw:
                return [f"ds_read_b128 {vr(fr['w'][f], 4)}, v{VWA + wreg[f]} offset:{o}"]
            return [f"ds_read_b64_tr_b16 {vr(fr['w'][f], 2)}, v{VWA + wreg[f]} offset:{o}",
                    f"ds_read_b64_tr_b16 {vr(fr['w'][f] + 2, 2)}, v{VWA + wreg[f]} offset:{o + 256}"]
        out.append(xr(0)); out += wr(0)
        if nx > 1: out.append(xr(1))
        for f in range(1, nw): out += wr(f)
        return out
    def mfmas(st):
        out = []
        fr = FR[st]
        for (f, t) in tiles:
            acc = vr(ACC[(f, t)], 16)
            w_, x_ = vr(fr['w'][f], 4), vr(fr['x'][t], 4)
            if kind == "qkv" and f == 2:
                out.append(f"v_mfma_f32_32x32x16_bf16 {acc}, {x_}, {w_}, {acc}")
            else:
                out.append(f"v_mfma_f32_32x32x16_bf16 {acc}, {w_}, {x_}, {acc}")
        return out
    cnt = [0]
    fifo = []
    def emit_read(x):
        a(x)
        d = x.split()[1].rstrip(",")
        fifo.append(int(d[2:].split(":")[0]))
    def need_regs(regs):
        last = -1
        for i_, d in enumerate(fifo):
            if d in regs: last = i_
        if last >= 0:
            a(f"s_waitcnt lgkmcnt({min(15, len(fifo) - 1 - last)})")
            del fifo[:last + 1]
    def drain():
        if fifo:
            a("s_waitcnt lgkmcnt(0)"); del fifo[:]
    RPG = int(os.environ.get("RPG", "4" if raw else "2"))
    def step(st, rd):
        fr = FR[st]
        m = mfmas(st); fill = list(rd)
        for i, mm in enumerate(m):
            f, t = tiles[i]
            need_regs({fr['w'][f], fr['w'][f] + 2, fr['x'][t]})
            a(mm)
            for x in fill[i * RPG:(i + 1) * RPG]: emit_read(x)
        if CALC:
            cnt[0] += 1
            lab = L(f"cs{cnt[0]}")
            a(f"s_cbranch_vcc{'nz' if st == 0 else 'z'} {lab}")
            for f in range(nw):
                a(f"v_mfma_f32_16x16x32_bf16 {vr(VCA + 4 * f, 4)}, {vr(fr['w'][f], 4)}, {vr(VSEL, 4)}, {vr(VCA + 4 * f, 4)}")
            a.label(lab)
    a(f"s_mov_b32 s{S_CS}, 0\ns_mov_b32 s{S_CNT}, {nst - 1}")
    addr_update()
    stamp(a, 2)
    a("s_barrier")
    stamp(a, 3)
    if DIAG: a("s_waitcnt lgkmcnt(0)")
    for x in reads(0, 0): emit_read(x)
    def stage(last):
        for ks in range(3):
            step(ks & 1, reads(ks + 1, (ks + 1) & 1))
        if not last:
            drain()
            addr_update()
            a("s_barrier")
            step(1, reads(0, 0))
        else:
            step(1, [])
    a.label(L("c_loop"))
    stage(False)
    a(f"s_sub_u32 s{S_CNT}, s{S_CNT}, 1\ns_cmp_lg_u32 s{S_CNT}, 0\ns_cbranch_scc1 {L('c_loop')}")
    stage(True)
    stamp(a, 4)

    T0, T1 = VT, VT + 1
    p2 = lambda r_: vr(r_, 2)
    if LN:
        a(f"""
        s_lshl_b32 s4, s{S_W}, 11
        s_add_u32 s4, s4, {SCR}
        v_lshlrev_b32 v{VT+2}, 2, v{T0}
        v_add_u32 v{VT+2}, s4, v{VT+2}
        v_lshlrev_b32 v{VT+3}, 4, v{T1}
        v_add_u32 v{VT+3}, s4, v{VT+3}
        """)
        if CALC:
            a(f"""
            v_and_b32 v{VT+4}, 1, v0
            v_lshlrev_b32 v{VT+4}, 6, v{VT+4}
            v_lshrrev_b32 v{VT+5}, 4, v0
            v_lshl_add_u32 v{VT+4}, v{VT+5}, 4, v{VT+4}
            v_add_u32 v{VT+4}, s4, v{VT+4}
            """)
            for f in range(nw):
                a(f"ds_write_b128 v{VT+4}, {vr(VCA + 4 * f, 4)} offset:{1024 + f * 128}")
        a("s_waitcnt vmcnt(0)")
        if kind == "w1":
            for f in range(nw):
                a(f"v_lshlrev_b32 v{VBIAS+f}, 16, v{VBIAS+f}")
                a(f"ds_write_b32 v{VT+2}, v{VBIAS+f} offset:{512 + f * 128}")
        if not CALC:
            for f in range(nw):
                a(f"ds_write_b32 v{VT+2}, v{VCS+f} offset:{f * 128}")
        a("s_waitcnt lgkmcnt(0)\ns_barrier")
        if DIAG and "ept" in XF: stamp(a, 2)
        if CALC:
            a(f"""
            s_xor_b32 s5, s{S_W}, 1
            s_lshl_b32 s5, s5, 11
            s_add_u32 s5, s5, {SCR}
            v_lshlrev_b32 v{VT+5}, 2, v{T0}
            v_add_u32 v{VT+4}, s5, v{VT+5}
            """)
            for f in range(nw):
                a(f"ds_read_b32 v{VCS+f}, v{VT+2} offset:{1024 + f * 128}")
                a(f"ds_read_b32 v{VCA+f}, v{VT+4} offset:{1024 + f * 128}")
            a("s_waitcnt lgkmcnt(0)")
            for f in range(nw):
                a(f"v_add_f32 v{VCS+f}, v{VCS+f}, v{VCA+f}")
            a(f"""
            s_or_b32 s5, s{S_MT}, s{S_TP}
            s_cmp_lg_u32 s5, 0
            s_cbranch_scc1 {L('nocs')}
            """)
            for f in range(nw):
                a(f"buffer_store_dword v{VCS+f}, v{VT+5}, s[44:47], s{56+f} offen")
            a.label(L("nocs"))
            for f in range(nw):
                a(f"ds_write_b32 v{VT+2}, v{VCS+f} offset:{f * 128}")
            a("s_waitcnt lgkmcnt(0)")
    FREE = FR[0]['x'][0]
    if kind == "qkv":
        src, size = bufsrc("qkv"); srd(a, 40, src, size)
        a(f"""
        s_lshl_b32 s5, s{S_MT}, 2
        s_add_u32 s5, s5, s{S_T0}
        s_lshl_b32 s4, s60, 6
        s_add_u32 s4, s4, s5
        s_lshl_b32 s14, s4, 11
        s_lshl_b32 s4, s61, 6
        s_add_u32 s4, s4, s5
        s_lshl_b32 s15, s4, 12
        s_add_u32 s15, s15, {WS_KV - WS_Q}
        s_lshl_b32 s4, s62, 6
        s_add_u32 s4, s4, s5
        s_lshl_b32 s13, s4, 12
        s_add_u32 s13, s13, {WS_KV - WS_Q}
        v_lshlrev_b32 v{VT+4}, 4, v0
        s_lshl_b32 s5, s{S_TP}, 8
        s_add_u32 s5, s5, {STAT}
        v_lshlrev_b32 v{VT+5}, 2, v{T0}
        v_add_u32 v{VT+5}, s5, v{VT+5}
        v_lshlrev_b32 v{VXB}, 4, v{T1}
        v_add_u32 v{VXB}, s5, v{VXB}
        """)
        CSQ, CSK = VEP, VEP + 16
        AB = VEP + 32
        TMP = VEP + 40
        VA_, VB_ = FREE, FREE + 16
        for i in range(4):
            a(f"ds_read_b128 {vr(CSQ + 4 * i, 4)}, v{VT+3} offset:{i * 32}")
            a(f"ds_read_b128 {vr(CSK + 4 * i, 4)}, v{VT+3} offset:{128 + i * 32}")
        for t in range(2):
            a(f"ds_read_b32 v{AB + 2 * t}, v{VT+5} offset:{t * 128}")
            a(f"ds_read_b32 v{AB + 2 * t + 1}, v{VT+5} offset:{512 + t * 128}")
        a("s_waitcnt lgkmcnt(0)")
        for i in range(4):
            a(f"v_mul_f32 v{AB + 4 + i}, {f32(QSCALE)}, v{AB + i}")
        def store_tile(acc, soff, off):
            for i in range(8):
                a(f"v_cvt_pk_bf16_f32 v{acc + i}, v{TMP + 2 * i}, v{TMP + 2 * i + 1}")
            a(f"buffer_store_dwordx4 {vr(acc, 4)}, v{VT+4}, s[40:43], s{soff} offen offset:{off}{ST}")
            a(f"buffer_store_dwordx4 {vr(acc + 4, 4)}, v{VT+4}, s[40:43], s{soff} offen offset:{off + 1024}{ST}")
        for t in range(2):
            for i in range(4):
                a(f"ds_read_b128 {vr(VA_ + 4 * i, 4)}, v{VXB} offset:{t * 128 + i * 32}")
                a(f"ds_read_b128 {vr(VB_ + 4 * i, 4)}, v{VXB} offset:{512 + t * 128 + i * 32}")
            for f, cs, ab in ((0, CSQ, AB + 4 + 2 * t), (1, CSK, AB + 2 * t)):
                acc = ACC[(f, t)]
                for i in range(0, 16, 2):
                    a(f"v_pk_mul_f32 {p2(TMP + i)}, {p2(cs + i)}, {p2(ab)} op_sel:[0,1]")
                for i in range(0, 16, 2):
                    a(f"v_pk_fma_f32 {p2(TMP + i)}, {p2(acc + i)}, {p2(ab)}, {p2(TMP + i)} op_sel_hi:[1,0,1]")
                if f == 0: store_tile(acc, 14, t * 2048)
                else: store_tile(acc, 15, 0)
            a("s_waitcnt lgkmcnt(0)")
            acc = ACC[(2, t)]
            assert (VCS + 2) % 2 == 0
            for i in range(0, 16, 2):
                a(f"v_pk_mul_f32 {p2(TMP + i)}, {p2(VB_ + i)}, {p2(VCS + 2)} op_sel_hi:[1,0]")
            for i in range(0, 16, 2):
                a(f"v_pk_fma_f32 {p2(TMP + i)}, {p2(acc + i)}, {p2(VA_ + i)}, {p2(TMP + i)}")
            store_tile(acc, 13, 2048)
            if t == 0:
                a("s_add_u32 s15, s15, 4096\ns_add_u32 s13, s13, 4096")
    elif kind == "w1":
        src, size = bufsrc("h"); srd(a, 40, src, size)
        a(f"""
        s_lshl_b32 s4, s{S_T0}, 7
        s_add_u32 s4, s4, {STAT}
        s_lshl_b32 s5, s{S_T1}, 7
        s_add_u32 s5, s5, {STAT}
        v_lshlrev_b32 v{VT+5}, 2, v{T0}
        v_add_u32 v{VXB}, s4, v{VT+5}
        v_add_u32 v{VXB+1}, s5, v{VT+5}
        s_lshl_b32 s4, s{S_MT}, 2
        s_add_u32 s6, s4, s{S_T0}
        s_add_u32 s7, s4, s{S_T1}
        s_mul_i32 s6, s6, {F // 16 * 1024}
        s_mul_i32 s7, s7, {F // 16 * 1024}
        s_mul_i32 s4, s{S_NT}, {14 * 1024}
        s_add_u32 s6, s6, s4
        s_add_u32 s7, s7, s4
        s_add_u32 s13, s6, {12 * 1024}
        s_mul_i32 s4, s{S_FP}, {6 * 1024}
        s_add_u32 s14, s6, s4
        s_add_u32 s15, s7, s4
        v_lshlrev_b32 v{VT+4}, 4, v0
        """)
        AB = VEP; KC0 = VEP + 4; KC1 = VEP + 6; KONE = VEP + 8; T2 = VEP + 12
        CS_, BI_ = FREE, FREE + 16
        for t in range(2):
            a(f"ds_read_b32 v{AB + 2 * t}, v{VXB + t}")
            a(f"ds_read_b32 v{AB + 2 * t + 1}, v{VXB + t} offset:512")
        C0 = -2.0 * math.log2(math.e) * math.sqrt(2.0 / math.pi)
        C1 = C0 * 0.044715
        for i in range(2):
            a(f"v_mov_b32 v{KC0+i}, {f32(C0)}\nv_mov_b32 v{KC1+i}, {f32(C1)}\nv_mov_b32 v{KONE+i}, 1.0")
        for f in range(4):
            for i in range(4):
                a(f"ds_read_b128 {vr(CS_ + 4 * i, 4)}, v{VT+3} offset:{f * 128 + i * 32}")
                a(f"ds_read_b128 {vr(BI_ + 4 * i, 4)}, v{VT+3} offset:{512 + f * 128 + i * 32}")
            a("s_waitcnt lgkmcnt(0)")
            if DIAG and "ept" in XF and f == 1: stamp(a, 3)
            for t in range(2):
                if (f, t) not in ACC: continue
                acc = ACC[(f, t)]; ab = AB + 2 * t
                E = range(0, 16, 2)
                for i in E:
                    a(f"v_pk_fma_f32 {p2(T2 + i)}, {p2(CS_ + i)}, {p2(ab)}, {p2(BI_ + i)} op_sel:[0,1,0]")
                for i in E:
                    a(f"v_pk_fma_f32 {p2(acc + i)}, {p2(acc + i)}, {p2(ab)}, {p2(T2 + i)} op_sel_hi:[1,0,1]")
                for i in E:
                    a(f"v_pk_mul_f32 {p2(T2 + i)}, {p2(acc + i)}, {p2(acc + i)}")
                for i in E:
                    a(f"v_pk_fma_f32 {p2(T2 + i)}, {p2(T2 + i)}, {p2(KC1)}, {p2(KC0)}")
                for i in E:
                    a(f"v_pk_mul_f32 {p2(T2 + i)}, {p2(T2 + i)}, {p2(acc + i)}")
                for i in range(16):
                    a(f"v_exp_f32 v{T2 + i}, v{T2 + i}")
                for i in E:
                    a(f"v_pk_add_f32 {p2(T2 + i)}, {p2(T2 + i)}, {p2(KONE)}")
                for i in range(16):
                    a(f"v_rcp_f32 v{T2 + i}, v{T2 + i}")
                for i in E:
                    a(f"v_pk_mul_f32 {p2(T2 + i)}, {p2(acc + i)}, {p2(T2 + i)}")
                for i in range(8):
                    a(f"v_cvt_pk_bf16_f32 v{acc + i}, v{T2 + 2 * i}, v{T2 + 2 * i + 1}")
                if f < 3:
                    so, off = 14 + t, f * 2048
                    if off + 1024 > 4095:
                        a(f"s_add_u32 s6, s{so}, {off}"); so, off = 6, 0
                else:
                    so, off = 13, 0
                a(f"buffer_store_dwordx4 {vr(acc, 4)}, v{VT+4}, s[40:43], s{so} offen offset:{off}{ST}")
                a(f"buffer_store_dwordx4 {vr(acc + 4, 4)}, v{VT+4}, s[40:43], s{so} offen offset:{off + 1024}{ST}")
    else:
        a("s_waitcnt vmcnt(0)")
        if SPLIT:
            src, size = bufsrc("xbuf"); srd(a, 44, src, size)
            src, size = bufsrc("flags"); srd(a, 52, src, size)
            a(f"""
            s_lshl_b32 s4, s{S_MT}, 3
            s_add_u32 s4, s4, s{S_NT}
            s_lshl_b32 s4, s4, 1
            s_add_u32 s4, s4, s{S_KH}
            s_lshl_b32 s4, s4, 2
            s_add_u32 s4, s4, s{S_W}
            s_xor_b32 s5, s4, 4
            s_lshl_b32 s6, s5, 12
            """)
            XP = FREE
            for f in range(2):
                for i in range(8):
                    a(f"v_cvt_pk_bf16_f32 v{XP + 8 * f + i}, v{ACC[(f, 1)] + 2 * i}, v{ACC[(f, 1)] + 2 * i + 1}")
                for j in range(2):
                    a(f"buffer_store_dwordx4 {vr(XP + 8 * f + 4 * j, 4)}, v{VFA}, s[44:47], s6 offen offset:{2048 * f + 1024 * j} sc1")
            a(f"""
            s_lshl_b32 s5, s5, 6
            v_mov_b32 v{VT+2}, 0
            v_mov_b32 v{VT+3}, 1
            s_lshl_b32 s6, s4, 12
            s_lshl_b32 s4, s4, 6
            """)
        for f in range(2):
            acc = ACC[(f, 0)]
            for i in range(8):
                srcs = [VRES + 8 * f + i] + ([VB2 + 8 * f + i] if kind == "w2" else [])
                for rsrc in srcs:
                    a(f"v_lshlrev_b32 v{VT+4}, 16, v{rsrc}\nv_and_b32 v{VT+5}, 0xffff0000, v{rsrc}")
                    a(f"v_pk_add_f32 {p2(acc + 2 * i)}, {p2(acc + 2 * i)}, {p2(VT + 4)}")
        if SPLIT:
            a(f"""
            s_waitcnt vmcnt(0)
            buffer_store_dword v{VT+3}, v{VT+2}, s[52:55], s5 offen sc1
            s_mov_b32 s60, 0x40000
            """)
            if DIAG: stamp(a, 3)
            a.label(L("poll"))
            a(f"""
            buffer_load_dword v{VT+3}, v{VT+2}, s[52:55], s4 offen sc1
            s_waitcnt vmcnt(0)
            v_readfirstlane_b32 s5, v{VT+3}
            s_cmp_eq_u32 s5, 1
            s_cbranch_scc1 {L('got')}
            s_sub_u32 s60, s60, 1
            s_cmp_lg_u32 s60, 0
            s_cbranch_scc1 {L('poll')}
            """)
            a.label(L("got"))
            if DIAG: stamp(a, 2)
            for q in range(4):
                a(f"buffer_load_dwordx4 {vr(XP + 4 * q, 4)}, v{VFA}, s[44:47], s6 offen offset:{1024 * q} sc1")
            for q in range(4):
                a(f"s_waitcnt vmcnt({3 - q})")
                for i in range(4):
                    rsrc = XP + 4 * q + i; o = ACC[(q >> 1, 0)] + 2 * (4 * (q & 1) + i)
                    a(f"v_lshlrev_b32 v{VT+4}, 16, v{rsrc}\nv_and_b32 v{VT+5}, 0xffff0000, v{rsrc}")
                    a(f"v_pk_add_f32 {p2(o)}, {p2(o)}, {p2(VT + 4)}")
        src, size = bufsrc(out_buf); srd(a, 48, src, size)
        TMP = FREE
        if out_buf == "out":
            a(f"v_lshl_add_u32 v{VOA}, v{VT+1}, 3, v{VOA}")
        for f in range(2):
            acc = ACC[(f, 0)]; pk = TMP + 8 * f
            for i in range(8):
                a(f"v_cvt_pk_bf16_f32 v{pk + i}, v{acc + 2 * i}, v{acc + 2 * i + 1}")
            if out_buf == "out":
                for j in range(2):
                    a(f"v_permlane32_swap_b32 v{pk + 4 * j}, v{pk + 4 * j + 2}")
                    a(f"v_permlane32_swap_b32 v{pk + 4 * j + 1}, v{pk + 4 * j + 3}")
                    a(f"buffer_store_dwordx4 {vr(pk + 4 * j, 4)}, v{VOA}, s[48:51], s56 offen offset:{64 * f + 32 * j}")
            else:
                for j in range(2):
                    a(f"buffer_store_dwordx4 {vr(pk + 4 * j, 4)}, v{VFA}, s[48:51], s57 offen offset:{2048 * f + 1024 * j}{ST}")
        if out_buf != "out":
            SU, SQ = VRES, VRES + 2
            a0, a1 = ACC[(0, 0)], ACC[(1, 0)]
            a(f"v_pk_add_f32 {p2(SU)}, {p2(a0)}, {p2(a1)}")
            a(f"v_pk_mul_f32 {p2(SQ)}, {p2(a0)}, {p2(a0)}")
            a(f"v_pk_fma_f32 {p2(SQ)}, {p2(a1)}, {p2(a1)}, {p2(SQ)}")
            for i in range(2, 16, 2):
                for b in (a0, a1):
                    a(f"v_pk_add_f32 {p2(SU)}, {p2(SU)}, {p2(b + i)}")
                    a(f"v_pk_fma_f32 {p2(SQ)}, {p2(b + i)}, {p2(b + i)}, {p2(SQ)}")
            src, size = bufsrc("stat"); srd(a, 40, src, size)
            a(f"""
            v_add_f32 v{SU}, v{SU}, v{SU+1}
            v_add_f32 v{SU+1}, v{SQ}, v{SQ+1}
            v_mov_b32 v{SQ}, v{SU}
            v_mov_b32 v{SQ+1}, v{SU+1}
            v_permlane32_swap_b32 v{SU}, v{SQ}
            v_permlane32_swap_b32 v{SU+1}, v{SQ+1}
            v_pk_add_f32 {p2(SU)}, {p2(SU)}, {p2(SQ)}
            s_lshl_b32 s4, s59, 14
            s_lshl_b32 s5, s58, 8
            s_add_u32 s4, s4, s5
            v_lshlrev_b32 v{VT+2}, 3, v{T0}
            buffer_store_dwordx2 {p2(SU)}, v{VT+2}, s[40:43], s4 offen{ST}
            """)
    stamp(a, 5)
    stamp_flush(a, 6, S_W, L("end"))
    a.label(L("end"))
    a("s_endpgm")
    return k

def attn(name, retile=False, pf=None):
    CT = 8; NS = 3; CH = CT * 4096; NCH = 64 // CT
    SCR = CH * NS
    LX = SCR + 8 * 4096
    k = Kernel(name, 256, 512, LX + 2048)
    a = k.a
    L = lambda s: f"L_{name}_{s}"
    stamp(a, 0); stamp_real(a, 1)
    load_kernargs(a)
    S_W, S_HD, S_QT, S_G, S_SLOT, S_CNT, S_RD, S_KH = 8, 9, 10, 11, 12, 13, 14, 15
    a(f"""
    s_cmp_ge_u32 s2, 256
    s_cbranch_scc1 {L('end')}
    s_and_b32 s4, s2, 7
    s_lshr_b32 s5, s2, 3
    s_lshr_b32 s6, s5, 3
    s_lshl_b32 s{S_HD}, s4, 2
    s_add_u32 s{S_HD}, s{S_HD}, s6
    s_and_b32 s5, s5, 7
    v_lshrrev_b32 v1, 6, v0
    v_and_b32 v0, 63, v0
    v_readfirstlane_b32 s{S_W}, v1
    s_waitcnt lgkmcnt(0)
    s_lshl_b32 s{S_QT}, s5, 3
    s_and_b32 s4, s{S_W}, 3
    s_lshl_b32 s4, s4, 1
    s_add_u32 s{S_QT}, s{S_QT}, s4
    s_lshr_b32 s{S_KH}, s{S_W}, 2
    """)
    src, size = bufsrc("kv"); srd(a, 44, src, size)
    a(f"s_add_u32 s46, s{S_HD}, 1\ns_lshl_b32 s46, s46, 18")
    VL16, VCUR, VNXT, VT = 2, 3, 4, 5
    Q = [8, 16]; KF = 24; VF = 32; SEL = 40; LA = [44, 48]; PP = 52
    VRA, VRT, VB = 60, 61, 62
    NEG = [64, 80]; SS = [96, 112]; O = [128, 144]; TMP = 160; RT = 176
    a(f"""
    v_lshlrev_b32 v{VL16}, 4, v0
    s_lshl_b32 s{S_G}, s{S_HD}, 18
    s_lshl_b32 s5, s{S_W}, 12
    s_add_u32 s{S_G}, s{S_G}, s5
    s_mov_b32 s{S_SLOT}, s5
    s_add_u32 s6, s5, {CH * NS}
    """)
    def dma(i):
        if "nodma" in os.environ.get("XF", "") and len(a.ins) > 300: return "s_nop 0"
        return f"buffer_load_dwordx4 v{VL16}, s[44:47], s{S_G} offen offset:{1024 * i} lds"
    def dma_adv():
        a(f"""
        s_add_u32 s{S_G}, s{S_G}, {CH}
        s_add_u32 s{S_SLOT}, s{S_SLOT}, {CH}
        s_cmp_eq_u32 s{S_SLOT}, s6
        s_cselect_b32 s{S_SLOT}, s5, s{S_SLOT}
        """)
    a(f"s_mov_b32 m0, s{S_SLOT}")
    for i in range(4): a(dma(i))
    dma_adv()
    src, size = bufsrc("q"); srd(a, 40, src, size)
    a(f"""
    s_lshl_b32 s4, s{S_HD}, 6
    s_add_u32 s4, s4, s{S_QT}
    s_lshl_b32 s4, s4, 11
    buffer_load_dwordx4 {vr(Q[0], 4)}, v{VL16}, s[40:43], s4 offen
    buffer_load_dwordx4 {vr(Q[0] + 4, 4)}, v{VL16}, s[40:43], s4 offen offset:1024
    buffer_load_dwordx4 {vr(Q[1], 4)}, v{VL16}, s[40:43], s4 offen offset:2048
    buffer_load_dwordx4 {vr(Q[1] + 4, 4)}, v{VL16}, s[40:43], s4 offen offset:3072
    s_mov_b32 m0, s{S_SLOT}
    """)
    for i in range(4): a(dma(i))
    dma_adv()
    nyoung = 4
    S_RS, S_RDST, S_RN, S_RV, S_RSTEP = 52, 53, 54, 55, 56
    def rt_decode(r):
        a(f"s_lshl_b32 s4, s2, 3\ns_add_u32 s4, s4, s{S_W}")
        if r == 0:
            a(f"""
            s_lshr_b32 s7, s4, 7
            s_and_b32 s4, s4, 127
            s_mov_b32 s{S_RV}, 1
            s_cmp_lt_u32 s4, 112
            s_cbranch_scc0 {L('r0wo')}
            s_mul_i32 s57, s4, 147
            s_lshr_b32 s57, s57, 10
            s_mul_i32 s58, s57, 7
            s_sub_u32 s58, s4, s58
            """)
            rt_set("w1", F, 7, 64)
            a(f"s_branch {L('r0j')}")
            a.label(L("r0wo"))
            a("s_sub_u32 s4, s4, 112\ns_lshr_b32 s57, s4, 1\ns_and_b32 s58, s4, 1")
            rt_set("wo", D, 2, 64)
            a.label(L("r0j"))
        elif r == 1:
            a(f"""
            s_mov_b32 s{S_RV}, 1
            s_cmp_lt_u32 s4, 1792
            s_cbranch_scc0 {L('r1wo')}
            s_lshr_b32 s7, s4, 5
            s_and_b32 s4, s4, 31
            s_lshr_b32 s57, s4, 2
            s_and_b32 s58, s4, 3
            """)
            rt_set("w2", D, 4, 224)
            a(f"s_branch {L('r1j')}")
            a.label(L("r1wo"))
            a("""
            s_sub_u32 s4, s4, 1792
            s_lshr_b32 s7, s4, 4
            s_and_b32 s4, s4, 15
            s_add_u32 s4, s4, 16
            s_lshr_b32 s57, s4, 1
            s_and_b32 s58, s4, 1
            """)
            rt_set("wo", D, 2, 64)
            a.label(L("r1j"))
        else:
            a(f"""
            s_lshr_b32 s7, s4, 7
            s_and_b32 s4, s4, 127
            s_cmp_lt_u32 s4, 96
            s_cselect_b32 s{S_RV}, 1, 0
            s_min_u32 s4, s4, 95
            s_and_b32 s57, s4, 31
            s_and_b32 s58, s57, 1
            s_lshr_b32 s57, s57, 1
            s_lshr_b32 s59, s4, 5
            s_lshl_b32 s59, s59, 1
            s_add_u32 s58, s58, s59
            """)
            rt_set("wqkv", 3 * D, 6, 64)
    def rt_set(w, N, nct, KG):
        src, size = bufsrc(w); srd(a, 60, src, size)
        a(f"""
        s_mul_i32 s{S_RS}, s7, {64 * N * 2}
        s_lshl_b32 s4, s4, 6
        s_add_u32 s{S_RS}, s{S_RS}, s4
        s_mov_b32 s{S_RN}, {N * 2}
        s_mul_i32 s{S_RDST}, s57, {KG}
        s_lshl_b32 s7, s7, 2
        s_add_u32 s{S_RDST}, s{S_RDST}, s7
        s_mul_i32 s{S_RDST}, s{S_RDST}, {nct}
        s_add_u32 s{S_RDST}, s{S_RDST}, s58
        s_lshl_b32 s{S_RDST}, s{S_RDST}, 10
        s_add_u32 s{S_RDST}, s{S_RDST}, {WT_OFF[w]}
        s_mov_b32 s{S_RSTEP}, {nct * 1024}
        """)
    def rt_issue():
        a(f"""
        v_lshrrev_b32 v{VRA}, 2, v0
        v_mul_lo_u32 v{VRA}, v{VRA}, s{S_RN}
        v_and_b32 v{VB}, 3, v0
        v_lshl_add_u32 v{VRA}, v{VB}, 4, v{VRA}
        s_lshl_b32 s4, s{S_RN}, 4
        s_add_u32 s7, s5, {SCR}
        """)
        for i in range(4):
            a(f"s_add_u32 m0, s7, {i * 1024}\nbuffer_load_dwordx4 v{VRA}, s[60:63], s{S_RS} offen lds")
            if i < 3: a(f"s_add_u32 s{S_RS}, s{S_RS}, s4")
    def rt_finish():
        for i in range(4):
            a(f"ds_read_b64_tr_b16 {vr(RT + 4 * i, 2)}, v{VRT} offset:{i * 1024}")
            a(f"ds_read_b64_tr_b16 {vr(RT + 4 * i + 2, 2)}, v{VRT} offset:{i * 1024 + 512}")
        a("s_waitcnt lgkmcnt(0)")
        for i in range(4):
            a(f"buffer_store_dwordx4 {vr(RT + 4 * i, 4)}, v{VL16}, s[40:43], s{S_RDST} offen{ST}")
            if i < 3: a(f"s_add_u32 s{S_RDST}, s{S_RDST}, s{S_RSTEP}")
    if retile:
        a(f"""
        v_lshrrev_b32 v{VRT}, 5, v0
        v_lshlrev_b32 v{VRT}, 8, v{VRT}
        v_bfe_u32 v{VB}, v0, 2, 2
        v_lshl_add_u32 v{VRT}, v{VB}, 6, v{VRT}
        v_bfe_u32 v{VB}, v0, 4, 1
        v_lshl_add_u32 v{VRT}, v{VB}, 5, v{VRT}
        v_and_b32 v{VB}, 3, v0
        v_lshl_add_u32 v{VRT}, v{VB}, 3, v{VRT}
        s_add_u32 s4, s5, {SCR}
        v_add_u32 v{VRT}, s4, v{VRT}
        """)
    a(f"""
    v_lshrrev_b32 v{VT}, 2, v0
    v_lshrrev_b32 v{VT+1}, 4, v0
    v_xor_b32 v{VT}, v{VT}, v{VT+1}
    v_and_b32 v{VT}, 1, v{VT}
    v_cmp_eq_u32 vcc, 0, v{VT}
    v_mov_b32 v{VT+1}, 0x3f803f80
    v_cndmask_b32 v{SEL}, 0, v{VT+1}, vcc
    v_mov_b32 v{SEL+1}, v{SEL}
    v_mov_b32 v{SEL+2}, v{SEL}
    v_mov_b32 v{SEL+3}, v{SEL}
    s_lshl_b32 s4, s{S_KH}, 14
    v_add_u32 v{VB+1}, s4, v{VL16}
    v_mov_b32 v{VCUR}, v{VB+1}
    v_add_u32 v{VNXT}, {CH}, v{VB+1}
    s_mov_b32 s{S_RD}, {2 * CH}
    s_mov_b32 s{S_CNT}, 0
    """)
    VBASE = VB + 1
    for x in range(2):
        for i in range(4): a(f"v_mov_b32 v{LA[x]+i}, 0")
        for i in range(16): a(f"v_mov_b32 v{O[x]+i}, 0")
    for i in range(4): a(f"v_mov_b32 v{VF+4+i}, 0\nv_mov_b32 v{PP+4+i}, 0")
    stamp(a, 2)
    a(f"s_waitcnt vmcnt({nyoung})\ns_barrier")
    stamp(a, 3)
    if retile:
        src, size = bufsrc("wt"); srd(a, 40, src, 0)
        a(f"s_mov_b32 s{S_RDST}, 0\ns_mov_b32 s{S_RSTEP}, 0")
    fifo = []
    def rd(reg, addr, off):
        a(f"ds_read_b128 {vr(reg, 4)}, v{addr} offset:{off}"); fifo.append(reg)
    def need(*regs):
        last = -1
        for i_, d in enumerate(fifo):
            if d in regs: last = i_
        if last >= 0:
            a(f"s_waitcnt lgkmcnt({len(fifo) - 1 - last})"); del fifo[:last + 1]
    def rdK(addr, t): rd(KF, addr, t * 4096); rd(KF + 4, addr, t * 4096 + 1024)
    def rdV(addr, t, j): rd(VF + 4 * j, addr, t * 4096 + 2048 + 1024 * j)
    def QK(x, j, C=None):
        C = C if C is not None else (vr(NEG[x], 16) if j == 0 else vr(SS[x], 16))
        a(f"v_mfma_f32_32x32x16_bf16 {vr(SS[x], 16)}, {vr(KF + 4 * j, 4)}, {vr(Q[x] + 4 * j, 4)}, {C}")
    def PV(x, j): a(f"v_mfma_f32_32x32x16_bf16 {vr(O[x], 16)}, {vr(VF + 4 * j, 4)}, {vr(PP + 4 * j, 4)}, {vr(O[x], 16)}")
    def LL(x, j): a(f"v_mfma_f32_16x16x32_bf16 {vr(LA[x], 4)}, {vr(SEL, 4)}, {vr(PP + 4 * j, 4)}, {vr(LA[x], 4)}")
    def rowmax(dst, s, tmp, extra=None):
        a(f"v_max3_f32 v{dst}, v{s}, v{s+1}, v{s+2}")
        for i in range(3, 15, 2):
            a(f"v_max3_f32 v{dst}, v{dst}, v{s+i}, v{s+i+1}")
        a(f"v_max_f32 v{dst}, v{dst}, v{s+15}\nv_mov_b32 v{tmp}, v{dst}\nv_permlane32_swap_b32 v{dst}, v{tmp}")
        if extra is None: a(f"v_max_f32 v{dst}, v{dst}, v{tmp}")
        else: a(f"v_max3_f32 v{dst}, v{dst}, v{tmp}, v{extra}")
    rdK(VL16, 0)
    need(KF, KF + 4)
    for x in range(2):
        QK(x, 0, "0"); QK(x, 1)
    rdK(VCUR, 0); rdV(VCUR, 0, 0)
    for x in range(2):
        rowmax(VT, SS[x], VT + 1)
        for i in range(16): a(f"v_sub_f32 v{NEG[x]+i}, 0, v{VT}")
    need(KF, KF + 4)
    QK(0, 0); QK(0, 1)
    a(f"v_exp_f32 v{TMP}, v{SS[0]}\nv_exp_f32 v{TMP+1}, v{SS[0]+1}")
    entry = list(fifo)
    if DIAG and "chunkts" in os.environ.get("XF", ""):
        a("s_memtime s[80:81]\nv_mov_b32 v200, 0")
    if "prio" in os.environ.get("XF", ""):
        a(f"s_cmp_eq_u32 s{S_KH}, 0\ns_cbranch_scc1 {L('np')}\ns_setprio 1")
        a.label(L("np"))
    a.label(L("loop"))
    NT = CT // 2
    S_SD, S_SS = 38, 39
    def rt_reads(par):
        for i in range(2):
            o = (2 * par + i) * 1024
            a(f"ds_read_b64_tr_b16 {vr(RT + 4 * i, 2)}, v{VRT} offset:{o}")
            a(f"ds_read_b64_tr_b16 {vr(RT + 4 * i + 2, 2)}, v{VRT} offset:{o + 512}")
        if par == 0:
            a(f"""
            s_mov_b32 s{S_SD}, s{S_RDST}
            s_mov_b32 s{S_SS}, s{S_RSTEP}
            s_cmp_eq_u32 s{S_CNT}, 0
            s_cselect_b32 s42, 0, {24 * MB}
            """)
    def rt_store(i):
        a(f"buffer_store_dwordx4 {vr(RT + 4 * i, 4)}, v{VL16}, s[40:43], s{S_SD} offen{ST}")
        a(f"s_add_u32 s{S_SD}, s{S_SD}, s{S_SS}")
    def rt_dec():
        a(f"s_cmp_eq_u32 s{S_CNT}, 2\ns_cbranch_scc1 {L('rt1')}\ns_cmp_ge_u32 s{S_CNT}, 4\ns_cbranch_scc1 {L('rt2')}")
        rt_decode(0); a(f"s_branch {L('rtgo')}")
        a.label(L("rt1")); rt_decode(1); a(f"s_branch {L('rtgo')}")
        a.label(L("rt2")); rt_decode(2)
        a(f"s_cmp_eq_u32 s{S_CNT}, 6\ns_cselect_b32 s62, 0, s62")
        a.label(L("rtgo"))
        a(f"""
        v_lshrrev_b32 v{VRA}, 2, v0
        v_mul_lo_u32 v{VRA}, v{VRA}, s{S_RN}
        v_and_b32 v{VB}, 3, v0
        v_lshl_add_u32 v{VRA}, v{VB}, 4, v{VRA}
        s_lshl_b32 s{S_RN}, s{S_RN}, 4
        """)
    def rt_load(i):
        a(f"s_add_u32 m0, s5, {SCR + i * 1024}\nbuffer_load_dwordx4 v{VRA}, s[60:63], s{S_RS} offen lds")
        a(f"s_add_u32 s{S_RS}, s{S_RS}, s{S_RN}")
    def last_dma():
        a(dma(3)); dma_adv()
    def chunk(rt, par=0):
        slots = {}
        if rt:
            slots[(0, 0)] = lambda: rt_reads(par)
            slots[(1, 1)] = lambda: rt_store(0)
            slots[(2, 1)] = lambda: rt_store(1)
            if par == 0: slots[(3, 0)] = rt_dec
            slots[(3, 1)] = lambda: rt_load(2 * par)
            slots[(5, 0)] = lambda: rt_load(2 * par + 1)
        slots[(6, 1)] = lambda: a(dma(1))
        slots[(7, 0)] = lambda: a(dma(2))
        slots[(7, 1)] = last_dma
        def slot(u, p):
            if (u, p) in slots: slots[(u, p)]()
        for t in range(NT):
            for x in range(2):
                y = 1 - x
                u = 2 * t + x
                e = lambda i: a(f"v_exp_f32 v{TMP + i}, v{SS[x] + i}")
                en = lambda i: a(f"v_exp_f32 v{TMP + i}, v{SS[y] + i}")
                c = lambda i: a(f"v_cvt_pk_bf16_f32 v{PP + i}, v{TMP + 2 * i}, v{TMP + 2 * i + 1}")
                naddr, nt_ = (VCUR, t + 1) if t + 1 < NT else (VNXT, 0)
                need(VF + 4)
                PV(y, 1)
                if x == 0: rdV(VCUR, t, 1)
                e(2); e(3); e(4)
                LL(y, 1)
                slot(u, 0)
                e(5); c(0); c(1)
                need(KF, KF + 4)
                QK(y, 0)
                e(6); e(7); e(8); c(2)
                QK(y, 1)
                if x == 0:
                    if t == NT - 1:
                        a(f"s_waitcnt vmcnt({4 if rt else 0})\ns_barrier")
                    rdK(naddr, nt_)
                    if t == NT - 1:
                        a(f"s_mov_b32 m0, s{S_SLOT}\n{dma(0)}")
                c(3); e(9); e(10); e(11)
                need(VF)
                PV(x, 0)
                if x == 1: rdV(naddr, nt_, 0)
                e(12); e(13); e(14); c(4)
                LL(x, 0)
                slot(u, 1)
                e(15); c(5); c(6); c(7); en(0); en(1)
        assert fifo == entry, (fifo, entry)
        if DIAG and "chunkts" in os.environ.get("XF", ""):
            a(f"s_sub_u32 s82, s80, s64\nv_mov_b32 v201, s82\nv_cmp_eq_u32 vcc, s{S_CNT}, v0\nv_cndmask_b32 v200, v200, v201, vcc\ns_memtime s[80:81]")
        a(f"""
        v_mov_b32 v{VCUR}, v{VNXT}
        v_add_u32 v{VNXT}, s{S_RD}, v{VBASE}
        s_add_u32 s{S_RD}, s{S_RD}, {CH}
        s_cmp_eq_u32 s{S_RD}, {CH * NS}
        s_cselect_b32 s{S_RD}, 0, s{S_RD}
        s_add_u32 s{S_CNT}, s{S_CNT}, 1
        """)
    chunk(retile, 0)
    if retile: chunk(True, 1)
    a(f"""
    s_cmp_lt_u32 s{S_CNT}, {NCH}
    s_cbranch_scc1 {L('loop')}
    s_waitcnt vmcnt(0) lgkmcnt(0)
    """)
    PV(1, 1); LL(1, 1)
    if DIAG and "chunkts" in os.environ.get("XF", ""):
        a(f"""
        s_sub_u32 s82, s80, s64
        v_writelane_b32 v200, s82, 8
        s_cmp_lg_u32 s2, 8
        s_cbranch_scc1 {L('nots')}
        s_mov_b32 s88, s34
        s_mov_b32 s89, s35
        s_mov_b32 s90, 256
        s_mov_b32 s91, 0x20000
        s_lshl_b32 s82, s{S_KH}, 6
        s_add_u32 s82, s82, 128
        v_lshlrev_b32 v201, 2, v0
        v_cmp_gt_u32 vcc, 9, v0
        s_and_b32 s83, s{S_W}, 3
        s_cmp_lg_u32 s83, 0
        s_cbranch_scc1 {L('nots')}
        s_and_saveexec_b64 s[84:85], vcc
        buffer_store_dword v200, v201, s[88:91], s82 offen
        s_mov_b64 exec, s[84:85]
        """)
        a.label(L("nots"))
    stamp(a, 4)
    if pf:
        a("s_mov_b32 s62, s5")
        prefetch(a, pf, S_W, 8, va=RT, vd=RT + 1)
        a("s_mov_b32 s5, s62")
    a(f"""
    s_add_u32 s4, s5, {SCR}
    v_add_u32 v{VT}, s4, v{VL16}
    s_xor_b32 s4, s5, {4 * 4096}
    s_add_u32 s4, s4, {SCR}
    v_add_u32 v{VT+1}, s4, v{VL16}
    s_lshl_b32 s4, s{S_W}, 8
    s_add_u32 s4, s4, {LX}
    v_lshl_add_u32 v{VRA}, v0, 2, s4
    v_xor_b32 v{VRT}, 1024, v{VRA}
    s_cmp_eq_u32 s{S_KH}, 0
    s_cbranch_scc0 {L('kh1')}
    """)
    assert LX % 2048 == 0
    for i in range(4): a(f"ds_write_b128 v{VT}, {vr(O[1] + 4 * i, 4)} offset:{i * 1024}")
    a(f"ds_write_b32 v{VRA}, v{LA[1]}\ns_branch {L('khj')}")
    a.label(L("kh1"))
    for i in range(4): a(f"ds_write_b128 v{VT}, {vr(O[0] + 4 * i, 4)} offset:{i * 1024}")
    a(f"ds_write_b32 v{VRA}, v{LA[0]}\ns_waitcnt lgkmcnt(0)")
    for i in range(16): a(f"v_mov_b32 v{O[0]+i}, v{O[1]+i}")
    for i in range(8): a(f"v_mov_b32 v{Q[0]+i}, v{Q[1]+i}")
    a(f"v_mov_b32 v{LA[0]}, v{LA[1]}\nv_mov_b32 v{NEG[0]}, v{NEG[1]}\ns_add_u32 s{S_QT}, s{S_QT}, 1")
    a.label(L("khj"))
    a("s_waitcnt lgkmcnt(0)\ns_barrier")
    for i in range(4): a(f"ds_read_b128 {vr(TMP + 4 * i, 4)}, v{VT+1} offset:{i * 1024}")
    a(f"ds_read_b32 v{VT}, v{VRT}\ns_waitcnt lgkmcnt(0)")
    OO = O[0]; LACC = LA[0]; QQ = Q[0]; SB = SS[1]
    for i in range(16): a(f"v_add_f32 v{OO+i}, v{OO+i}, v{TMP+i}")
    a(f"v_add_f32 v{LACC}, v{LACC}, v{VT}")
    a(f"v_mov_b32 v{VT}, v{LACC}")
    for i in range(0, 16, 2):
        a(f"v_max3_f32 v{VT}, v{VT}, abs(v{OO+i}), abs(v{OO+i+1})")
    a(f"v_mov_b32 v{VT+1}, v{LACC}")
    for i in range(16):
        a(f"v_add_f32 v{VT+1}, v{VT+1}, v{OO+i}")
    a(f"""
    s_mov_b32 s4, {f32(2.0 ** 60)}
    v_cmp_nle_f32 vcc, v{VT}, s4
    v_cmp_u_f32 s[6:7], v{VT+1}, v{VT+1}
    s_or_b64 vcc, vcc, s[6:7]
    s_cbranch_vccz {L('fin')}
    """)
    M, LS, AL = VCUR, VNXT, VT + 2
    a(f"""
    v_sub_f32 v{M}, 0, v{NEG[0]}
    v_mov_b32 v{LS}, 0
    s_lshl_b32 s{S_G}, s{S_HD}, 18
    s_mov_b32 s{S_CNT}, 0
    """)
    for i in range(16): a(f"v_mov_b32 v{OO+i}, 0")
    a.label(L("slow"))
    a(f"""
    buffer_load_dwordx4 {vr(KF, 4)}, v{VL16}, s[44:47], s{S_G} offen
    buffer_load_dwordx4 {vr(KF + 4, 4)}, v{VL16}, s[44:47], s{S_G} offen offset:1024
    buffer_load_dwordx4 {vr(VF, 4)}, v{VL16}, s[44:47], s{S_G} offen offset:2048
    buffer_load_dwordx4 {vr(VF + 4, 4)}, v{VL16}, s[44:47], s{S_G} offen offset:3072
    s_waitcnt vmcnt(0)
    v_mfma_f32_32x32x16_bf16 {vr(SB, 16)}, {vr(KF, 4)}, {vr(QQ, 4)}, 0
    v_mfma_f32_32x32x16_bf16 {vr(SB, 16)}, {vr(KF + 4, 4)}, {vr(QQ + 4, 4)}, {vr(SB, 16)}
    """)
    rowmax(VT, SB, VT + 1, extra=M)
    a(f"""
    v_sub_f32 v{AL}, v{M}, v{VT}
    v_exp_f32 v{AL}, v{AL}
    v_mov_b32 v{M}, v{VT}
    v_mul_f32 v{LS}, v{LS}, v{AL}
    """)
    for i in range(16): a(f"v_sub_f32 v{TMP+i}, v{SB+i}, v{M}")
    for i in range(16): a(f"v_exp_f32 v{TMP+i}, v{TMP+i}")
    for i in range(16): a(f"v_mul_f32 v{OO+i}, v{OO+i}, v{AL}")
    for i in range(8): a(f"v_cvt_pk_bf16_f32 v{PP + i}, v{TMP + 2 * i}, v{TMP + 2 * i + 1}")
    for i in range(8):
        a(f"v_lshlrev_b32 v{VT}, 16, v{PP+i}\nv_and_b32 v{VT+1}, 0xffff0000, v{PP+i}")
        a(f"v_add_f32 v{LS}, v{LS}, v{VT}\nv_add_f32 v{LS}, v{LS}, v{VT+1}")
    PV(0, 0); PV(0, 1)
    a(f"""
    s_add_u32 s{S_G}, s{S_G}, 4096
    s_add_u32 s{S_CNT}, s{S_CNT}, 1
    s_cmp_lt_u32 s{S_CNT}, 64
    s_cbranch_scc1 {L('slow')}
    v_mov_b32 v{VT}, v{LS}
    v_permlane32_swap_b32 v{LS}, v{VT}
    v_add_f32 v{LACC}, v{LS}, v{VT}
    """)
    a.label(L("fin"))
    src, size = bufsrc("o"); srd(a, 48, src, size)
    a(f"""
    v_rcp_f32 v{VT}, v{LACC}
    s_lshl_b32 s4, s{S_QT}, 16
    s_lshl_b32 s7, s{S_HD}, 11
    s_add_u32 s4, s4, s7
    """)
    for i in range(16): a(f"v_mul_f32 v{TMP+i}, v{OO+i}, v{VT}")
    for i in range(8): a(f"v_cvt_pk_bf16_f32 v{PP + i}, v{TMP + 2 * i}, v{TMP + 2 * i + 1}")
    a(f"""
    buffer_store_dwordx4 {vr(PP, 4)}, v{VL16}, s[48:51], s4 offen{ST}
    buffer_store_dwordx4 {vr(PP + 4, 4)}, v{VL16}, s[48:51], s4 offen offset:1024{ST}
    """)
    stamp(a, 5)
    stamp_flush(a, 6, S_W, L("end"))
    a.label(L("end"))
    a("s_endpgm")
    return k

def main():
    out = sys.argv[1]
    specs = [
        lambda: gemm("qkv1_kernel", "qkv", "x", raw=True),
        lambda: attn("attn_kernel", retile=True),
        lambda: gemm("wo1_kernel", "wo", "o", res_buf="x", out_buf="x1"),
        lambda: gemm("w1a_kernel", "w1", "x1", zero_flags=True),
        lambda: gemm("w2a_kernel", "w2", "h", res_buf="x1", out_buf="x2"),
        lambda: gemm("qkv2_kernel", "qkv", "x2", csmode="load"),
        lambda: attn("attn2_kernel"),
        lambda: gemm("wo2_kernel", "wo", "o", res_buf="x2", out_buf="x3"),
        lambda: gemm("w1b_kernel", "w1", "x3", csmode="load", zero_flags=True),
        lambda: gemm("w2b_kernel", "w2", "h", res_buf="x3", out_buf="out"),
    ]
    ks = []
    for i, sp in enumerate(specs):
        KIDX[0] = i
        LAYER[0] = i // 5
        STATSEL[0] = {2: 0, 3: 0, 4: 1, 5: 1, 7: 2, 8: 2}.get(i, 3)
        ks.append(sp())
    byname = {k.name: k for k in ks}
    order = [k.name for k in ks]
    hdr = open("interleave_layers__mha_block__mixer_channel_mlp__prompt.s.ref").read().split("; Override")[0]
    txt = hdr
    for n in order:
        k = byname[n]
        txt += f"; @launch kernel={k.name} grid=({k.grid},1,1) block=({k.block},1,1) lds={k.lds}\n"
    txt += '.amdgcn_target "amdgcn-amd-amdhsa--gfx950"\n.text\n.p2align 8\nL_text_start:\n'
    kds = ""
    for k in ks:
        b, kd = k.finish()
        txt += b; kds += kd
    txt += 'L_text_end:\n.section .rodata,"a"\n' + kds
    sm = os.environ.get("STMOD")
    if sm:
        import re
        txt = re.sub(r"(buffer_store_dwordx[24] v\[\d+:\d+\], v\d+, s\[(?:40:43|48:51)\][^\n]*)", lambda m: m.group(1) + " " + sm, txt)
    open(out, "w").write(txt)

if __name__ == "__main__":
    main()
```
